```python
import torch

def _softmax(x, axis=-1):
    return torch.softmax(x, dim=axis)
def _gelu(x):
    return torch.nn.functional.gelu(x, approximate="tanh")
def _silu(x):
    return torch.nn.functional.silu(x)
def _sigmoid(x):
    return torch.sigmoid(x)
def _layernorm(x, axis=-1, eps=1e-5):
    m = x.mean(dim=axis, keepdim=True)
    v = x.var(dim=axis, keepdim=True, unbiased=False)
    return (x - m) / torch.sqrt(v + eps)
def _scatter_add(tgt, idx, src, axis=0):
    return tgt.clone().index_add_(axis, idx, src)
def _segment_sum(src, seg, n):
    out = torch.zeros((n,) + src.shape[1:], dtype=src.dtype)
    return out.index_add_(0, seg, src)
def _pad(x, pw):
    flat = tuple(v for pair in reversed(pw) for v in pair)
    return torch.nn.functional.pad(x, flat)

kernel_name = 'standalone__gqa_block_cached__decode'

def setup_inputs():

    _w = (lambda a: (lambda t: t.to(torch.bfloat16) if t.is_floating_point() else t)(torch.as_tensor(a)))
    B, Sq, D = 4, 1, 512
    Hq, Hkv, Sk, Dh = 32, 8, 16384, 128
    assert Hq % Hkv == 0, (Hq, Hkv)
    return {
        "x": _w((lambda *s: torch.randn(*s, dtype=torch.bfloat16) * 0.8)(B, Sq, D)),
        "k_cache": _w((lambda *s: torch.randn(*s, dtype=torch.bfloat16) * 0.8)(B, Hkv, Sk, Dh)),
        "v_cache": _w((lambda *s: torch.randn(*s, dtype=torch.bfloat16) * 0.05)(B, Hkv, Sk, Dh)),
        "wq": _w((lambda *s: torch.randn(*s, dtype=torch.bfloat16) * 0.8)(D, Hq * Dh) * (D ** -0.5)),
        "wo": _w((lambda *s: torch.randn(*s, dtype=torch.bfloat16) * 0.05)(Hq * Dh, D) * ((Hq * Dh) ** -0.5)),
    }

def reference(x, k_cache, v_cache, wq, wo):
    B, Sq, D = x.shape
    Hq, Dh = 32, 128
    Hkv = k_cache.shape[1]
    rep = Hq // Hkv
    q = (lambda x, *d: x.permute(*d))((x @ wq).reshape(B, Sq, Hq, Dh), 0, 2, 1, 3)
    k = (lambda x, n, axis: torch.repeat_interleave(x, n, dim=axis))(k_cache, rep, axis=1)
    v = (lambda x, n, axis: torch.repeat_interleave(x, n, dim=axis))(v_cache, rep, axis=1)
    scores = torch.einsum("bhqd,bhkd->bhqk", q, k) * (Dh ** -0.5)
    p = _softmax(scores, axis=-1)
    o = torch.einsum("bhqk,bhkd->bhqd", p, v)
    return (lambda x, *d: x.permute(*d))(o, 0, 2, 1, 3).reshape(B, Sq, Hq * Dh) @ wo
```

```python
import math, sys, struct

KN = "standalone__gqa_block_cached__decode_kernel"
HEAD = """; Kernarg layout for this problem (64 bytes, ptrs only, base s[0:1]):
"""

def f2u(x):
    return struct.unpack("<I", struct.pack("<f", x))[0]

def gen(depth=20, piece=8, pstride=65536, rrot=1, grot=0, flags="nt", wflags="nt", ring=8,
        stamps=False, spin=1 << 20, prio=3):
    L = []
    def A(s): L.append("    " + s)
    def lab(s): L.append(s + ":")
    def nop(n): A(f"s_nop {n-1}")
    def C(s): L.append("    ; " + s)

    UNIT = 16384
    RING = ring * UNIT
    WST = RING
    FL = RING + 16384
    LDS = FL + 256
    EPO = 0
    QOFF = 4096
    OPOFF = 1 << 20
    P2OFF = 2 << 20
    STOFF = 4 << 20
    cs = (128 ** -0.5) * math.log2(math.e)

    npiece = 16 // piece
    span = npiece * pstride
    R = (4 << 20) // span
    G = pstride // (piece * 1024)
    assert R * G == 256 and R >= 1
    NB = 32

    sX, sK, sV, sWQ, sWO, sOUT, sDBG, sWS = 4, 6, 8, 10, 12, 14, 16, 18
    sPAIR, sSPL, sB, sHKV = 32, 33, 34, 35
    sTAG, sCS = 36, 37
    stampn = [0]
    def stamp(idx):
        if stamps:
            A(f"s_memrealtime s[{60+2*idx}:{61+2*idx}]")

    C("workgroups past the 256 that carry work leave at once")
    A("s_cmp_ge_u32 s2, 256")
    A("s_cbranch_scc1 L_end")
    A("s_load_dwordx16 s[4:19], s[0:1], 0")
    stamp(0)
    A("v_lshrrev_b32 v1, 6, v0")
    A("v_and_b32 v0, 63, v0")
    A(f"s_lshr_b32 s{sPAIR}, s2, 3")
    A("v_readfirstlane_b32 s3, v1")
    A(f"s_and_b32 s{sSPL}, s2, 7")
    A(f"s_lshr_b32 s{sB}, s2, 6")
    A(f"s_and_b32 s{sHKV}, s{sPAIR}, 7")
    A("s_cmp_eq_u32 s3, 4")
    A("s_cbranch_scc1 L_loader")

    A("v_lshrrev_b32 v7, 4, v0")
    A("v_and_b32 v21, 15, v0")
    A("v_and_b32 v22, 3, v0")
    A("v_bfe_u32 v23, v0, 2, 2")
    A("s_waitcnt lgkmcnt(0)")
    A(f"s_load_dword s{sTAG}, s[{sWS}:{sWS+1}], {EPO}")
    A("s_cmp_lg_u32 s3, 0")
    A("s_cbranch_scc1 L_noq")
    C("---- wave 0: this workgroup's 16 columns of q = x @ wq for all four batches")
    A(f"s_mov_b32 s28, s{sWQ}"); A(f"s_mov_b32 s29, s{sWQ+1}"); A("s_mov_b32 s30, 0x400000"); A("s_mov_b32 s31, 0x20000")
    A(f"s_lshl_b32 s40, s{sSPL}, 2")
    A(f"s_add_u32 s40, s40, s{sB}")
    A(f"s_lshl_b32 s41, s{sHKV}, 10")
    A("s_lshl_b32 s42, s40, 5")
    A("s_add_u32 s41, s41, s42")
    A("v_lshrrev_b32 v24, 1, v0")
    A("v_lshlrev_b32 v24, 13, v24")
    A("v_and_b32 v25, 1, v0")
    A("v_lshl_add_u32 v24, v25, 4, v24")
    A("v_lshlrev_b32 v25, 10, v22")
    A("v_lshl_add_u32 v25, v23, 6, v25")
    A("v_lshl_add_u32 v25, v7, 4, v25")
    for u in range(4):
        A(f"global_load_dwordx4 v[{44+4*u}:{47+4*u}], v25, s[{sX}:{sX+1}] offset:{u*256}")
    for i in range(16):
        A(f"s_mov_b32 m0, {WST + i*1024}")
        if i: A(f"s_add_u32 s41, s41, {32*8192}")
        else: nop(1)
        A(f"buffer_load_dwordx4 v24, s[28:31], s41 offen {wflags} lds")
    lab("L_noq")
    C("K fragment addresses: key*256 + ((t ^ (key>>2))*64) + ((g ^ (key&3))*16) + wave*4096")
    A("s_lshl_b32 s43, s3, 12")
    A("v_xor_b32 v24, v7, v22")
    A("v_lshlrev_b32 v24, 4, v24")
    A("v_lshl_add_u32 v24, v21, 8, v24")
    A("v_add_u32 v24, s43, v24")
    for t in range(4):
        A(f"v_xor_b32 v25, {t}, v23")
        A(f"v_lshl_add_u32 v{2+t}, v25, 6, v24")
    C("V fragment address: g*1024 + (l&15)*16 + wave*4096")
    A("v_lshlrev_b32 v6, 10, v7")
    A("v_lshl_add_u32 v6, v21, 4, v6")
    A("v_add_u32 v6, s43, v6")
    C("selector masks")
    A("v_mov_b32 v24, 0xffff")
    A("v_mov_b32 v25, 0xffff0000")
    A("v_mov_b32 v13, 0")
    A("v_mov_b32 v14, 0")
    A("v_cmp_eq_u32 vcc, 0, v22"); nop(2); A("v_cndmask_b32 v13, v13, v24, vcc")
    A("v_cmp_eq_u32 vcc, 1, v22"); nop(2); A("v_cndmask_b32 v13, v13, v25, vcc")
    A("v_cmp_eq_u32 vcc, 2, v22"); nop(2); A("v_cndmask_b32 v14, v14, v24, vcc")
    A("v_cmp_eq_u32 vcc, 3, v22"); nop(2); A("v_cndmask_b32 v14, v14, v25, vcc")
    A("v_mov_b32 v15, 0xff800000")
    A("v_mov_b32 v16, 0")
    A("v_mov_b32 v17, 0")
    A("v_mov_b32 v18, 1")
    A(f"v_mov_b32 v19, {FL}")
    for r in range(88, 96): A(f"v_mov_b32 v{r}, 0")
    A(f"s_mov_b32 s{sCS}, {f2u(cs):#x}")
    A("s_barrier")
    A("s_waitcnt lgkmcnt(0)")
    A(f"s_add_u32 s{sTAG}, s{sTAG}, 1")
    A("s_cmp_lg_u32 s3, 0")
    A("s_cbranch_scc1 L_qgather")
    A("v_lshl_add_u32 v24, v7, 3, v23")
    A("v_lshlrev_b32 v24, 5, v24")
    A("v_lshl_add_u32 v24, v22, 3, v24")
    A(f"v_add_u32 v24, {WST}, v24")
    for grp in range(4):
        A(f"s_waitcnt vmcnt({12 - 4*grp})")
        for tq in range(4):
            t = grp * 4 + tq
            A(f"ds_read_b64_tr_b16 v[{112+4*t}:{113+4*t}], v24 offset:{t*1024}")
            A(f"ds_read_b64_tr_b16 v[{114+4*t}:{115+4*t}], v24 offset:{t*1024+128}")
        if grp:
            A("s_waitcnt lgkmcnt(8)")
            u = grp - 1
            for tq in range(4):
                t = u * 4 + tq
                cin = "0" if u == 0 else f"v[{60+4*tq}:{63+4*tq}]"
                A(f"v_mfma_f32_16x16x32_bf16 v[{60+4*tq}:{63+4*tq}], v[{112+4*t}:{115+4*t}], v[{44+4*u}:{47+4*u}], {cin}")
    A("s_waitcnt lgkmcnt(0)")
    for tq in range(4):
        t = 12 + tq
        A(f"v_mfma_f32_16x16x32_bf16 v[{60+4*tq}:{63+4*tq}], v[{112+4*t}:{115+4*t}], v[56:59], v[{60+4*tq}:{63+4*tq}]")
    A("v_lshlrev_b32 v25, 14, v22")
    A("v_lshl_add_u32 v25, v7, 4, v25")
    A(f"s_lshl_b32 s41, s{sHKV}, 11")
    A("s_lshl_b32 s42, s40, 6")
    A("s_add_u32 s41, s41, s42")
    A(f"s_add_u32 s41, s41, {QOFF}")
    A("v_add_u32 v25, s41, v25")
    nop(4)
    for r in range(4):
        A(f"v_add_f32_dpp v{76+r}, v{64+r}, v{60+r} row_shl:4 row_mask:0xf bank_mask:0xf bound_ctrl:1")
    for r in range(4):
        A(f"v_add_f32_dpp v{76+r}, v{68+r}, v{76+r} row_shl:8 row_mask:0xf bank_mask:0xf bound_ctrl:1")
    for r in range(4):
        A(f"v_add_f32_dpp v{76+r}, v{72+r}, v{76+r} row_shl:12 row_mask:0xf bank_mask:0xf bound_ctrl:1")
    A("v_cvt_pk_bf16_f32 v80, v76, v77")
    A(f"v_mov_b32 v81, s{sTAG}")
    A("v_cvt_pk_bf16_f32 v82, v78, v79")
    A(f"v_mov_b32 v83, s{sTAG}")
    A("s_mov_b32 exec_lo, 0x000f000f")
    A("s_mov_b32 exec_hi, 0x000f000f")
    A(f"global_store_dwordx4 v25, v[80:83], s[{sWS}:{sWS+1}] sc1")
    A("s_mov_b64 exec, -1")
    stamp(1)
    lab("L_qgather")
    C("---- every consumer wave gathers q of its (batch, kv head): tagged granules")
    A("v_lshlrev_b32 v24, 9, v23")
    A("v_lshl_add_u32 v24, v22, 7, v24")
    A("v_lshl_add_u32 v24, v7, 5, v24")
    A(f"s_lshl_b32 s41, s{sPAIR}, 11")
    A(f"s_add_u32 s41, s41, {QOFF}")
    A("v_add_u32 v24, s41, v24")
    A(f"s_mov_b32 s44, {spin}")
    lab("L_qpoll")
    A(f"global_load_dwordx4 v[44:47], v24, s[{sWS}:{sWS+1}] sc1")
    A(f"global_load_dwordx4 v[48:51], v24, s[{sWS}:{sWS+1}] offset:16 sc1")
    A("s_sub_u32 s44, s44, 1")
    A("s_cbranch_scc1 L_qdone")
    A("s_waitcnt vmcnt(0)")
    A(f"v_xor_b32 v25, s{sTAG}, v45")
    A(f"v_xor_b32 v26, s{sTAG}, v47")
    A(f"v_xor_b32 v27, s{sTAG}, v49")
    A(f"v_xor_b32 v20, s{sTAG}, v51")
    A("v_or3_b32 v25, v25, v26, v27")
    A("v_or_b32 v25, v25, v20")
    A("v_cmp_ne_u32 vcc, 0, v25")
    A("s_cbranch_vccnz L_qpoll")
    lab("L_qdone")
    A("s_waitcnt vmcnt(0)")
    for t in range(4):
        for e in range(4):
            A(f"v_mov_b32_dpp v{28+4*t+e}, v{44+2*e} quad_perm:[{t},{t},{t},{t}] row_mask:0xf bank_mask:0xf")
    stamp(2)
    C("---- prefetch this wave's 16 rows x 128 columns of wo")
    A(f"s_lshl_b32 s40, s{sHKV}, 2")
    A(f"s_add_u32 s40, s40, s{sB}")
    A("s_lshl_b32 s41, s40, 7")
    A(f"s_lshr_b32 s42, s{sSPL}, 2")
    A("s_lshl_b32 s45, s42, 6")
    A("s_add_u32 s41, s41, s45")
    A("s_lshr_b32 s45, s3, 1")
    A("s_lshl_b32 s45, s45, 5")
    A("s_add_u32 s41, s41, s45")
    A("s_and_b32 s45, s3, 1")
    A("s_lshl_b32 s45, s45, 2")
    A("s_add_u32 s41, s41, s45")
    A("s_lshl_b32 s41, s41, 10")
    A(f"s_and_b32 s46, s{sSPL}, 3")
    A("s_lshl_b32 s45, s46, 8")
    A("s_add_u32 s41, s41, s45")
    A("v_lshlrev_b32 v24, 10, v7")
    A("v_lshl_add_u32 v24, v21, 4, v24")
    A("v_add_u32 v24, s41, v24")
    for tau in range(4):
        if tau: A("v_add_u32 v24, 0x2000, v24")
        A(f"global_load_dwordx4 v[{96+4*tau}:{99+4*tau}], v24, s[{sWO}:{sWO+1}] {wflags}")
    C("---- main loop over 64-key blocks; this wave takes 16 keys of each")
    A("s_mov_b32 s47, 0")
    A("s_mov_b32 s48, 0")
    A("s_mov_b32 s49, 0")
    lab("L_blk")
    for t in range(4): A(f"v_add_u32 v{8+t}, s48, v{2+t}")
    A(f"s_add_u32 s50, s48, {UNIT}")
    A("v_add_u32 v12, s50, v6")
    A("s_cmp_gt_u32 s49, s47")
    A("s_cbranch_scc1 L_kok")
    A(f"s_mov_b32 s44, {spin}")
    lab("L_kpoll")
    A("ds_read_b32 v20, v19")
    A("s_sub_u32 s44, s44, 1")
    A("s_cbranch_scc1 L_kok")
    A("s_waitcnt lgkmcnt(0)")
    A("v_readfirstlane_b32 s49, v20")
    A("s_cmp_gt_u32 s49, s47")
    A("s_cbranch_scc0 L_kpoll")
    lab("L_kok")
    for t in range(4): A(f"ds_read_b128 v[{44+4*t}:{47+4*t}], v{8+t}")
    A("s_lshr_b32 s51, s48, 12")
    A("s_add_u32 s47, s47, 1")
    A("v_add_u32 v21, s51, v19")
    for t in range(4):
        A(f"s_waitcnt lgkmcnt({3-t})")
        cin = "0" if t == 0 else "v[76:79]"
        A(f"v_mfma_f32_16x16x32_bf16 v[76:79], v[{44+4*t}:{47+4*t}], v[{28+4*t}:{31+4*t}], {cin}")
    A("s_mov_b64 exec, 1")
    A("ds_add_u32 v21, v18 offset:4")
    A("s_mov_b64 exec, -1")
    A("s_cmp_gt_u32 s49, s47")
    A("s_cbranch_scc1 L_vok")
    nop(3)
    A("v_max3_f32 v20, v76, v77, v78")
    A("v_max_f32 v20, v20, v79")
    A("v_cmp_gt_f32 vcc, v20, v15")
    A("s_cbranch_vccz L_nomax1")
    A("s_mov_b32 s52, 1")
    A("s_branch L_newmax")
    lab("L_nomax1")
    def softmax():
        for r in range(4): A(f"v_fma_f32 v{76+r}, v{76+r}, s{sCS}, -v16")
        for r in range(4): A(f"v_exp_f32 v{76+r}, v{76+r}")
        nop(1)
        for r in range(4): A(f"v_cvt_pk_bf16_f32 v{24+r}, v{76+r}, v{76+r}")
        A("v_add_f32 v76, v76, v77")
        A("v_add_f32 v78, v78, v79")
        for r in range(4):
            A(f"v_and_b32 v{80+2*r}, v{24+r}, v13")
            A(f"v_and_b32 v{81+2*r}, v{24+r}, v14")
        A("v_add_f32 v76, v76, v78")
        A("v_add_f32 v17, v17, v76")
    softmax()
    A(f"s_mov_b32 s44, {spin}")
    lab("L_vpoll")
    A("ds_read_b32 v20, v19")
    A("s_sub_u32 s44, s44, 1")
    A("s_cbranch_scc1 L_vok1")
    A("s_waitcnt lgkmcnt(0)")
    A("v_readfirstlane_b32 s49, v20")
    A("s_cmp_gt_u32 s49, s47")
    A("s_cbranch_scc0 L_vpoll")
    lab("L_vok1")
    for tau in range(4): A(f"ds_read_b128 v[{60+4*tau}:{63+4*tau}], v12 offset:{tau*256}")
    A("s_branch L_pv")
    lab("L_vok")
    for tau in range(4): A(f"ds_read_b128 v[{60+4*tau}:{63+4*tau}], v12 offset:{tau*256}")
    A("v_max3_f32 v20, v76, v77, v78")
    A("v_max_f32 v20, v20, v79")
    A("v_cmp_gt_f32 vcc, v20, v15")
    A("s_cbranch_vccz L_nomax2")
    A("s_mov_b32 s52, 0")
    lab("L_newmax")
    C("running max rose for some head: take the true max over the 16 keys and rescale")
    A("v_mov_b32 v24, v20")
    nop(2)
    A("v_permlane16_swap_b32 v20, v24")
    nop(1)
    A("v_max_f32 v20, v20, v24")
    A("v_mov_b32 v24, v20")
    nop(2)
    A("v_permlane32_swap_b32 v20, v24")
    nop(1)
    A("v_max3_f32 v20, v20, v24, v15")
    A("v_sub_f32 v24, v15, v20")
    A(f"v_mul_f32 v24, s{sCS}, v24")
    A("v_exp_f32 v24, v24")
    A("v_mov_b32 v15, v20")
    A(f"v_mul_f32 v16, s{sCS}, v20")
    A("v_mul_f32 v17, v17, v24")
    for r in range(88, 96): A(f"v_mul_f32 v{r}, v{r}, v24")
    A("s_cmp_eq_u32 s52, 1")
    A("s_cbranch_scc1 L_nomax1")
    lab("L_nomax2")
    softmax()
    lab("L_pv")
    A("s_add_u32 s47, s47, 1")
    A(f"s_add_u32 s48, s48, {2*UNIT}")
    A(f"s_and_b32 s48, s48, {RING-1}")
    for tau in range(4):
        A(f"s_waitcnt lgkmcnt({3-tau})")
        A(f"v_mfma_f32_16x16x16_bf16 v[88:91], v[{60+4*tau}:{61+4*tau}], v[{80+2*tau}:{81+2*tau}], v[88:91]")
        A(f"v_mfma_f32_16x16x16_bf16 v[92:95], v[{62+4*tau}:{63+4*tau}], v[{80+2*tau}:{81+2*tau}], v[92:95]")
    A("s_mov_b64 exec, 1")
    A("ds_add_u32 v21, v18 offset:8")
    A("s_mov_b64 exec, -1")
    A(f"s_cmp_lt_u32 s47, {2*NB}")
    A("s_cbranch_scc1 L_blk")
    stamp(3)
    C("---- combine the four waves' partial results through LDS")
    A("v_mov_b32 v24, v17")
    A("v_lshlrev_b32 v20, 4, v0")
    A("s_lshl_b32 s43, s3, 11")
    A("v_permlane16_swap_b32 v17, v24")
    A(f"s_add_u32 s43, s43, {WST}")
    A("v_add_f32 v17, v17, v24")
    A("v_mov_b32 v24, v17")
    A("v_add_u32 v25, s43, v20")
    A("v_lshlrev_b32 v26, 3, v23")
    A("v_permlane32_swap_b32 v17, v24")
    A("s_lshl_b32 s43, s3, 5")
    A("v_add_f32 v17, v17, v24")
    A(f"s_add_u32 s43, s43, {WST+8192}")
    A("v_add_u32 v27, s43, v26")
    A("ds_write_b128 v25, v[88:91]")
    A("ds_write_b128 v25, v[92:95] offset:1024")
    A("ds_write_b64 v27, v[16:17]")
    A("s_and_b32 s43, s3, 1")
    A("s_lshl_b32 s43, s43, 10")
    A(f"s_add_u32 s43, s43, {WST}")
    A("v_add_u32 v25, s43, v20")
    A(f"v_add_u32 v27, {WST+8192}, v26")
    A("s_waitcnt lgkmcnt(0)")
    A("s_barrier")
    A("s_cmp_eq_u32 s3, 3")
    A("s_cbranch_scc1 L_h1")
    for w in range(4): A(f"ds_read_b64 v[{44+2*w}:{45+2*w}], v27 offset:{w*32}")
    for w in range(4): A(f"ds_read_b128 v[{60+4*w}:{63+4*w}], v25 offset:{w*2048}")
    A("v_lshlrev_b32 v26, 9, v23")
    A("v_lshl_add_u32 v26, v7, 7, v26")
    A("v_lshl_add_u32 v26, v22, 4, v26")
    A("s_lshl_b32 s41, s2, 12")
    A(f"s_add_u32 s41, s41, {OPOFF}")
    A("s_lshl_b32 s45, s3, 6")
    A("s_add_u32 s45, s45, s41")
    A(f"s_and_b32 s53, s{sTAG}, 0xff")
    A("s_waitcnt lgkmcnt(4)")
    A("v_max3_f32 v20, v44, v46, v48")
    A("v_max_f32 v20, v20, v50")
    for w in range(4): A(f"v_sub_f32 v{52+w}, v{44+2*w}, v20")
    for w in range(4): A(f"v_exp_f32 v{52+w}, v{52+w}")
    A("s_cmp_eq_u32 s3, 2")
    A("s_cbranch_scc1 L_pubml")
    A("v_add_u32 v26, s45, v26")
    A("v_mov_b32 v27, 0xffffff00")
    A("s_waitcnt lgkmcnt(0)")
    for r in range(4): A(f"v_mul_f32 v{76+r}, v{60+r}, v52")
    for w in range(1, 4):
        for r in range(4): A(f"v_fmac_f32 v{76+r}, v{60+4*w+r}, v{52+w}")
    for r in range(4): A(f"v_and_or_b32 v{76+r}, v{76+r}, v27, s53")
    A(f"global_store_dwordx4 v26, v[76:79], s[{sWS}:{sWS+1}] sc1")
    A("s_branch L_h1")
    lab("L_pubml")
    A("v_mul_f32 v77, v45, v52")
    A("v_fmac_f32 v77, v47, v53")
    A("v_fmac_f32 v77, v49, v54")
    A("v_fmac_f32 v77, v51, v55")
    A("v_mov_b32 v76, v20")
    A(f"v_mov_b32 v78, s{sTAG}")
    A(f"v_mov_b32 v79, s{sTAG}")
    A("v_lshlrev_b32 v26, 4, v23")
    A("v_add_u32 v26, s41, v26")
    A("s_mov_b64 exec, 0x1111")
    A(f"global_store_dwordx4 v26, v[76:79], s[{sWS}:{sWS+1}] offset:2048 sc1")
    A("s_mov_b64 exec, -1")
    A("s_waitcnt lgkmcnt(0)")
    lab("L_h1")
    stamp(4)
    C("---- hand-off 1: gather the 8 splits x 4 batches of this wave's 16 rows of one head")
    A("v_lshlrev_b32 v24, 18, v23")
    A("v_lshl_add_u32 v24, v22, 12, v24")
    A(f"s_lshl_b32 s41, s{sHKV}, 15")
    A(f"s_add_u32 s41, s41, {OPOFF}")
    A(f"s_lshl_b32 s45, s{sB}, 4")
    A("s_add_u32 s45, s45, s41")
    A("v_add_u32 v26, s45, v24")
    A(f"s_lshl_b32 s45, s{sB}, 9")
    A("s_add_u32 s41, s41, s45")
    A("s_lshl_b32 s45, s42, 8")
    A("s_add_u32 s41, s41, s45")
    A("s_lshl_b32 s45, s3, 6")
    A("s_add_u32 s41, s41, s45")
    A("v_lshl_add_u32 v24, v7, 4, v24")
    A("v_add_u32 v24, s41, v24")
    A("v_add_u32 v25, 0x4000, v24")
    A("v_add_u32 v27, 0x4000, v26")
    A(f"s_and_b32 s53, s{sTAG}, 0xff")
    A(f"s_mov_b32 s44, {spin}")
    lab("L_h1poll")
    A(f"global_load_dwordx4 v[44:47], v26, s[{sWS}:{sWS+1}] offset:2048 sc1")
    A(f"global_load_dwordx4 v[48:51], v27, s[{sWS}:{sWS+1}] offset:2048 sc1")
    A(f"global_load_dwordx4 v[52:55], v24, s[{sWS}:{sWS+1}] sc1")
    A(f"global_load_dwordx4 v[56:59], v25, s[{sWS}:{sWS+1}] sc1")
    A("s_sub_u32 s44, s44, 1")
    A("s_cbranch_scc1 L_h1done")
    A("s_waitcnt vmcnt(0)")
    for r in range(8): A(f"v_xor_b32 v{60+r}, s53, v{52+r}")
    A("v_or3_b32 v60, v60, v61, v62")
    A("v_or3_b32 v63, v63, v64, v65")
    A("v_or3_b32 v60, v60, v66, v67")
    A(f"v_xor_b32 v61, s{sTAG}, v46")
    A(f"v_xor_b32 v62, s{sTAG}, v50")
    A("v_or_b32 v60, v60, v63")
    A("v_and_b32 v60, 0xff, v60")
    A("v_or3_b32 v60, v60, v61, v62")
    A("v_cmp_ne_u32 vcc, 0, v60")
    A("s_cbranch_vccnz L_h1poll")
    lab("L_h1done")
    A("s_waitcnt vmcnt(0)")
    stamp(5)
    A("v_max_f32 v20, v44, v48")
    nop(2)
    A("v_max_f32_dpp v20, v20, v20 quad_perm:[1,0,3,2] row_mask:0xf bank_mask:0xf")
    nop(2)
    A("v_max_f32_dpp v20, v20, v20 quad_perm:[2,3,0,1] row_mask:0xf bank_mask:0xf")
    A("v_sub_f32 v44, v44, v20")
    A("v_sub_f32 v48, v48, v20")
    A("v_exp_f32 v44, v44")
    A("v_exp_f32 v48, v48")
    nop(1)
    A("v_mul_f32 v20, v44, v45")
    A("v_fmac_f32 v20, v48, v49")
    for r in range(4): A(f"v_mul_f32 v{60+r}, v{52+r}, v44")
    A("v_add_f32_dpp v20, v20, v20 quad_perm:[1,0,3,2] row_mask:0xf bank_mask:0xf")
    for r in range(4): A(f"v_fmac_f32 v{60+r}, v{56+r}, v48")
    A("v_add_f32_dpp v20, v20, v20 quad_perm:[2,3,0,1] row_mask:0xf bank_mask:0xf")
    for r in range(4): A(f"v_add_f32_dpp v{60+r}, v{60+r}, v{60+r} quad_perm:[1,0,3,2] row_mask:0xf bank_mask:0xf")
    A("v_rcp_f32 v20, v20")
    for r in range(4): A(f"v_add_f32_dpp v{60+r}, v{60+r}, v{60+r} quad_perm:[2,3,0,1] row_mask:0xf bank_mask:0xf")
    for r in range(4): A(f"v_mul_f32 v{60+r}, v{60+r}, v20")
    for r in range(4): A(f"v_cvt_pk_bf16_f32 v{60+r}, v{60+r}, v{60+r}")
    for r in range(4):
        A(f"v_and_b32 v{80+2*r}, v{60+r}, v13")
        A(f"v_and_b32 v{81+2*r}, v{60+r}, v14")
    A("v_lshlrev_b32 v20, 4, v0")
    A("s_lshl_b32 s43, s3, 11")
    for tau in range(4):
        c0 = "0" if tau == 0 else "v[88:91]"
        c1 = "0" if tau == 0 else "v[92:95]"
        A(f"v_mfma_f32_16x16x16_bf16 v[88:91], v[{96+4*tau}:{97+4*tau}], v[{80+2*tau}:{81+2*tau}], {c0}")
        A(f"v_mfma_f32_16x16x16_bf16 v[92:95], v[{98+4*tau}:{99+4*tau}], v[{80+2*tau}:{81+2*tau}], {c1}")
    C("second scratch area (ring slot 0 is free by now)")
    A("v_add_u32 v25, s43, v20")
    A("s_and_b32 s43, s3, 1")
    A("s_lshl_b32 s43, s43, 10")
    A("v_add_u32 v27, s43, v20")
    A("v_lshlrev_b32 v26, 9, v23")
    A("v_lshl_add_u32 v26, v7, 7, v26")
    A("v_lshl_add_u32 v26, v22, 4, v26")
    A("s_lshl_b32 s41, s46, 6")
    A("ds_write_b128 v25, v[88:91]")
    A("ds_write_b128 v25, v[92:95] offset:1024")
    A("s_lshl_b32 s45, s40, 1")
    A("s_add_u32 s41, s41, s45")
    A("s_add_u32 s41, s41, s42")
    A("s_lshl_b32 s41, s41, 11")
    A("s_lshl_b32 s45, s3, 6")
    A("s_add_u32 s41, s41, s45")
    A(f"s_add_u32 s41, s41, {P2OFF}")
    A("v_add_u32 v26, s41, v26")
    A("s_waitcnt lgkmcnt(0)")
    A("s_barrier")
    A("s_cmp_eq_u32 s3, 3")
    A("s_cbranch_scc1 L_fin")
    A("s_cmp_eq_u32 s3, 2")
    A("s_cbranch_scc1 L_h2")
    for w in range(4): A(f"ds_read_b128 v[{60+4*w}:{63+4*w}], v27 offset:{w*2048}")
    A("v_mov_b32 v27, 0xffffff00")
    A("s_waitcnt lgkmcnt(2)")
    for r in range(4): A(f"v_add_f32 v{60+r}, v{60+r}, v{64+r}")
    A("s_waitcnt lgkmcnt(0)")
    for r in range(4): A(f"v_add_f32 v{68+r}, v{68+r}, v{72+r}")
    for r in range(4): A(f"v_add_f32 v{60+r}, v{60+r}, v{68+r}")
    for r in range(4): A(f"v_and_or_b32 v{60+r}, v{60+r}, v27, s53")
    A(f"global_store_dwordx4 v26, v[60:63], s[{sWS}:{sWS+1}] sc1")
    A("s_branch L_fin")
    lab("L_h2")
    stamp(6)
    C("---- hand-off 2: sum 64 row-slices for 8 outputs of one batch")
    A("v_lshrrev_b32 v24, 1, v0")
    A("v_lshlrev_b32 v24, 11, v24")
    A("v_and_b32 v25, 1, v0")
    A("v_lshl_add_u32 v24, v25, 4, v24")
    A("s_lshr_b32 s41, s2, 6")
    A("s_lshl_b32 s41, s41, 17")
    A("s_and_b32 s45, s2, 63")
    A("s_lshl_b32 s45, s45, 5")
    A("s_add_u32 s41, s41, s45")
    A(f"s_add_u32 s41, s41, {P2OFF}")
    A("v_add_u32 v24, s41, v24")
    A("v_add_u32 v25, 0x10000, v24")
    A(f"s_mov_b32 s44, {spin}")
    lab("L_h2poll")
    A(f"global_load_dwordx4 v[52:55], v24, s[{sWS}:{sWS+1}] sc1")
    A(f"global_load_dwordx4 v[56:59], v25, s[{sWS}:{sWS+1}] sc1")
    A("s_sub_u32 s44, s44, 1")
    A("s_cbranch_scc1 L_h2done")
    A("s_waitcnt vmcnt(0)")
    for r in range(8): A(f"v_xor_b32 v{60+r}, s53, v{52+r}")
    A("v_or3_b32 v60, v60, v61, v62")
    A("v_or3_b32 v63, v63, v64, v65")
    A("v_or3_b32 v60, v60, v66, v67")
    A("v_or_b32 v60, v60, v63")
    A("v_and_b32 v60, 0xff, v60")
    A("v_cmp_ne_u32 vcc, 0, v60")
    A("s_cbranch_vccnz L_h2poll")
    lab("L_h2done")
    A("s_waitcnt vmcnt(0)")
    stamp(7)
    for r in range(4): A(f"v_add_f32 v{52+r}, v{52+r}, v{56+r}")
    for dpp in ("quad_perm:[2,3,0,1]", "row_ror:4", "row_ror:8"):
        for r in range(4): A(f"v_add_f32_dpp v{52+r}, v{52+r}, v{52+r} {dpp} row_mask:0xf bank_mask:0xf")
    for sw in ("v_permlane16_swap_b32", "v_permlane32_swap_b32"):
        for r in range(4): A(f"v_mov_b32 v{56+r}, v{52+r}")
        for r in range(4): A(f"{sw} v{52+r}, v{56+r}")
        for r in range(4): A(f"v_add_f32 v{52+r}, v{52+r}, v{56+r}")
    A("s_bfe_u32 s41, s2, 0x20004")
    A("s_lshl_b32 s41, s41, 10")
    for r in range(4): A(f"v_mov_b32_dpp v{56+r}, v{52+r} quad_perm:[1,0,3,2] row_mask:0xf bank_mask:0xf")
    A("s_lshr_b32 s45, s2, 6")
    A("s_lshl_b32 s45, s45, 8")
    A("s_add_u32 s41, s41, s45")
    A("s_bfe_u32 s45, s2, 0x20002")
    A("s_lshl_b32 s45, s45, 6")
    A("s_add_u32 s41, s41, s45")
    A("s_and_b32 s45, s2, 3")
    A("s_lshl_b32 s45, s45, 2")
    A("s_add_u32 s41, s41, s45")
    for r in range(4): A(f"v_cvt_pk_bf16_f32 v{52+r}, v{52+r}, v{56+r}")
    A("v_mov_b32 v24, s41")
    A("s_mov_b64 exec, 1")
    for r in range(4): A(f"global_store_dword v24, v{52+r}, s[{sOUT}:{sOUT+1}] offset:{r*16}")
    A("s_cmp_lg_u32 s2, 0")
    A("s_cbranch_scc1 L_fin")
    C("every workgroup has published tagged data by now: advance the hand-off epoch")
    A(f"v_mov_b32 v25, s{sTAG}")
    A("v_mov_b32 v24, 0")
    A(f"global_store_dword v24, v25, s[{sWS}:{sWS+1}] offset:{EPO}")
    lab("L_fin")
    if stamps:
        A("s_waitcnt vmcnt(0)")
        stamp(8)
        A("s_getreg_b32 s59, hwreg(HW_REG_XCC_ID)")
        A("s_waitcnt lgkmcnt(0)")
        A("s_mul_i32 s41, s2, 5")
        A("s_add_u32 s41, s41, s3")
        A("s_lshl_b32 s41, s41, 6")
        A(f"s_add_u32 s41, s41, {STOFF}")
        A("s_mov_b64 exec, 1")
        A("v_mov_b32 v24, s41")
        for i in range(9):
            A(f"v_mov_b32 v25, s{60+2*i}")
            A(f"global_store_dword v24, v25, s[{sWS}:{sWS+1}] offset:{4*i}")
        A("v_mov_b32 v25, s59")
        A(f"global_store_dword v24, v25, s[{sWS}:{sWS+1}] offset:36")
    A("s_endpgm")

    lab("L_loader")
    if prio: A(f"s_setprio {prio}")
    A("v_lshrrev_b32 v7, 4, v0")
    A("v_and_b32 v8, 15, v0")
    for i in range(4):
        A(f"v_add_u32 v9, {4*i}, v7")
        A("v_xor_b32 v9, v9, v8")
        A("v_lshlrev_b32 v9, 4, v9")
        A(f"v_lshl_add_u32 v{2+i}, v7, 8, v9")
    A("v_lshlrev_b32 v6, 4, v0")
    A("v_lshlrev_b32 v10, 2, v0")
    A(f"v_add_u32 v10, {FL}, v10")
    A("v_mov_b32 v11, 0")
    A("ds_write_b32 v10, v11")
    A(f"v_mov_b32 v10, {FL}")
    A(f"s_lshl_b32 s40, s{sPAIR}, 22")
    A("s_mov_b32 s41, 0")
    A("s_mov_b32 s42, 0")
    A("s_mov_b32 s43, 0")
    A("s_waitcnt lgkmcnt(0)")
    A(f"s_mov_b32 s20, s{sK}"); A(f"s_mov_b32 s21, s{sK+1}"); A("s_mov_b32 s22, 0x8000000"); A("s_mov_b32 s23, 0x20000")
    A(f"s_mov_b32 s24, s{sV}"); A(f"s_mov_b32 s25, s{sV+1}"); A("s_mov_b32 s26, 0x8000000"); A("s_mov_b32 s27, 0x20000")
    def addr():
        A("s_lshl_b32 s46, s41, 3")
        A(f"s_add_u32 s46, s46, s{sSPL}")
        A(f"s_lshr_b32 s47, s46, {G.bit_length()-1}")
        A(f"s_and_b32 s48, s46, {G-1}")
        if rrot:
            A(f"s_mul_i32 s49, s{sPAIR}, {rrot}")
            A("s_add_u32 s47, s47, s49")
            A(f"s_and_b32 s47, s47, {R-1}")
        if grot:
            A(f"s_mul_i32 s49, s{sPAIR}, {grot}")
            A("s_add_u32 s48, s48, s49")
            A(f"s_and_b32 s48, s48, {G-1}")
        A(f"s_mul_i32 s47, s47, {span}")
        A(f"s_mul_i32 s48, s48, {piece*1024}")
        A("s_add_u32 s44, s47, s48")
        A("s_add_u32 s44, s44, s40")
    grp = min(piece, 4)
    pubpos = (15 + depth) % 16
    publag = (15 + depth) // 16
    uid = [0]
    def unit(which, first_iter, u_static=None):
        srd = "s[20:23]" if which == 0 else "s[24:27]"
        k = uid[0]; uid[0] += 1
        if u_static is None or u_static >= ring:
            A("s_waitcnt lgkmcnt(0)")
            A("v_readfirstlane_b32 s50, v12")
            A("s_cmp_ge_u32 s50, s51")
            A(f"s_cbranch_scc1 L_free{k}")
            A(f"s_mov_b32 s52, {spin}")
            lab(f"L_wfree{k}")
            A("ds_read_b32 v12, v13 offset:4")
            A("s_sub_u32 s52, s52, 1")
            A(f"s_cbranch_scc1 L_free{k}")
            A("s_waitcnt lgkmcnt(0)")
            A("v_readfirstlane_b32 s50, v12")
            A("s_cmp_ge_u32 s50, s51")
            A(f"s_cbranch_scc0 L_wfree{k}")
            lab(f"L_free{k}")
        for i in range(16):
            pi, kk = divmod(i, piece)
            if i % grp == 0:
                A(f"s_add_u32 s45, s44, {pi*pstride + kk*1024}")
                A(f"s_add_u32 m0, s42, {i*1024}")
            g_idx = None if u_static is None else u_static * 16 + i
            if g_idx is None or g_idx >= depth:
                A(f"s_waitcnt vmcnt({depth-1})")
            elif i % grp == 0:
                nop(1)
            va = f"v{2+(i&3)}" if which == 0 else "v6"
            off = (i % grp) * 1024
            A(f"buffer_load_dwordx4 {va}, {srd}, s45 offen offset:{off} {flags} lds")
            if i == pubpos and (u_static is None or u_static >= publag):
                A("s_add_u32 s43, s43, 1")
                A("v_mov_b32 v11, s43")
                A("ds_write_b32 v10, v11")
            if i == 11 and (u_static is None or u_static + 1 >= ring):
                A(f"s_add_u32 s50, s42, {UNIT}")
                A(f"s_and_b32 s50, s50, {RING-1}")
                A("s_lshr_b32 s50, s50, 12")
                A("v_add_u32 v13, s50, v10")
                A("s_lshl_b32 s51, s41, 1")
                A(f"s_add_u32 s51, s51, {which+1}")
                A(f"s_lshr_b32 s51, s51, {ring.bit_length()-1}")
                A("s_lshl_b32 s51, s51, 2")
                A("ds_read_b32 v12, v13 offset:4")
            if u_static is not None and u_static * 16 + i == min(depth, 16) - 1:
                A("s_barrier")
        A(f"s_add_u32 s42, s42, {UNIT}")
        A(f"s_and_b32 s42, s42, {RING-1}")
    npeel = ring // 2
    for n in range(npeel):
        addr()
        unit(0, True, 2*n)
        unit(1, True, 2*n+1)
        A("s_add_u32 s41, s41, 1")
    lab("L_ld")
    addr()
    unit(0, False)
    unit(1, False)
    A("s_add_u32 s41, s41, 1")
    A(f"s_cmp_lt_u32 s41, {NB}")
    A("s_cbranch_scc1 L_ld")
    total = 2 * NB
    published = total - publag
    for u in range(published, total):
        left = (total - 1 - u) * 16
        A(f"s_waitcnt vmcnt({left})")
        A(f"v_mov_b32 v11, {u+1}")
        A("ds_write_b32 v10, v11")
    A("s_waitcnt lgkmcnt(0)")
    if stamps:
        stamp(8)
        A("s_waitcnt lgkmcnt(0)")
        A("s_mul_i32 s41, s2, 5")
        A("s_add_u32 s41, s41, 4")
        A("s_lshl_b32 s41, s41, 6")
        A(f"s_add_u32 s41, s41, {STOFF}")
        A("s_mov_b64 exec, 1")
        A("v_mov_b32 v24, s41")
        A("v_mov_b32 v25, s60")
        A(f"global_store_dword v24, v25, s[{sWS}:{sWS+1}]")
        A("v_mov_b32 v25, s76")
        A(f"global_store_dword v24, v25, s[{sWS}:{sWS+1}] offset:32")
    lab("L_end")
    A("s_endpgm")

    src = HEAD + f"; @launch grid=(256,1,1) block=(320,1,1) lds={LDS}\n"
    src += f""".amdgcn_target "amdgcn-amd-amdhsa--gfx950"
.text
.globl {KN}
.p2align 8
.type {KN},@function
{KN}:
""" + "\n".join(L) + f"""
.section .rodata,"a"
.p2align 6
.amdhsa_kernel {KN}
  .amdhsa_next_free_vgpr 176
  .amdhsa_next_free_sgpr 96
  .amdhsa_accum_offset 176
  .amdhsa_group_segment_fixed_size 0
  .amdhsa_kernarg_size 64
  .amdhsa_user_sgpr_count 2
  .amdhsa_user_sgpr_kernarg_segment_ptr 1
  .amdhsa_system_sgpr_workgroup_id_x 1
  .amdhsa_float_denorm_mode_32 3
.end_amdhsa_kernel
"""
    return src

if __name__ == "__main__":
    kw = eval("dict(" + (sys.argv[2] if len(sys.argv) > 2 else "") + ")")
    open(sys.argv[1], "w").write(gen(**kw))
```

```python
import math, sys, struct

KN = "standalone__gqa_block_cached__decode_kernel"
HEAD = """; Kernarg layout for this problem (64 bytes, ptrs only, base s[0:1]):
"""

def f2u(x):
    return struct.unpack("<I", struct.pack("<f", x))[0]

def gen(depth=20, piece=8, pstride=65536, rrot=1, grot=0, flags="nt", wflags="nt", ring=8,
        stamps=False, spin=1 << 20, prio=3, probe=None):
    if probe is not None: stamps = True
    L = []
    def A(s): L.append("    " + s)
    def lab(s): L.append(s + ":")
    def nop(n): A(f"s_nop {n-1}")
    def C(s): L.append("    ; " + s)

    UNIT = 16384
    RING = ring * UNIT
    WST = RING
    FL = RING + 16384
    LDS = FL + 256
    EPO = 0
    QOFF = 4096
    OPOFF = 1 << 20
    P2OFF = 2 << 20
    STOFF = 4 << 20
    cs = (128 ** -0.5) * math.log2(math.e)

    npiece = 16 // piece
    span = npiece * pstride
    R = (4 << 20) // span
    G = pstride // (piece * 1024)
    assert R * G == 256 and R >= 1
    NB = 32

    sX, sK, sV, sWQ, sWO, sOUT, sDBG, sWS = 4, 6, 8, 10, 12, 14, 16, 18
    sPAIR, sSPL, sB, sHKV = 32, 33, 34, 35
    sTAG, sCS = 36, 37
    stampn = [0]
    def stamp(idx):
        if stamps:
            A(f"s_memrealtime s[{60+2*idx}:{61+2*idx}]")

    C("workgroups past the 256 that carry work leave at once")
    A("s_cmp_ge_u32 s2, 256")
    A("s_cbranch_scc1 L_end")
    A("s_load_dwordx16 s[4:19], s[0:1], 0")
    stamp(0)
    A("v_lshrrev_b32 v1, 6, v0")
    A("v_and_b32 v0, 63, v0")
    A(f"s_lshr_b32 s{sPAIR}, s2, 3")
    A("v_readfirstlane_b32 s3, v1")
    A(f"s_and_b32 s{sSPL}, s2, 7")
    A(f"s_lshr_b32 s{sB}, s2, 6")
    A(f"s_and_b32 s{sHKV}, s{sPAIR}, 7")
    A("s_cmp_eq_u32 s3, 4")
    A("s_cbranch_scc1 L_loader")

    A("v_lshrrev_b32 v7, 4, v0")
    A("v_and_b32 v21, 15, v0")
    A("v_and_b32 v22, 3, v0")
    A("v_bfe_u32 v23, v0, 2, 2")
    A("s_waitcnt lgkmcnt(0)")
    A(f"s_load_dword s{sTAG}, s[{sWS}:{sWS+1}], {EPO}")
    A("s_cmp_lg_u32 s3, 0")
    A("s_cbranch_scc1 L_noq")
    C("---- wave 0: this workgroup's 16 columns of q = x @ wq for all four batches")
    A(f"s_mov_b32 s28, s{sWQ}"); A(f"s_mov_b32 s29, s{sWQ+1}"); A("s_mov_b32 s30, 0x400000"); A("s_mov_b32 s31, 0x20000")
    A(f"s_lshl_b32 s40, s{sSPL}, 2")
    A(f"s_add_u32 s40, s40, s{sB}")
    A(f"s_lshl_b32 s41, s{sHKV}, 10")
    A("s_lshl_b32 s42, s40, 5")
    A("s_add_u32 s41, s41, s42")
    A("v_lshrrev_b32 v24, 1, v0")
    A("v_lshlrev_b32 v24, 13, v24")
    A("v_and_b32 v25, 1, v0")
    A("v_lshl_add_u32 v24, v25, 4, v24")
    A("v_lshlrev_b32 v25, 10, v22")
    A("v_lshl_add_u32 v25, v23, 6, v25")
    A("v_lshl_add_u32 v25, v7, 4, v25")
    for u in range(4):
        A(f"global_load_dwordx4 v[{44+4*u}:{47+4*u}], v25, s[{sX}:{sX+1}] offset:{u*256}")
    for i in range(16):
        A(f"s_mov_b32 m0, {WST + i*1024}")
        if i: A(f"s_add_u32 s41, s41, {32*8192}")
        else: nop(1)
        A(f"buffer_load_dwordx4 v24, s[28:31], s41 offen {wflags} lds")
    lab("L_noq")
    C("K fragment addresses: key*256 + ((t ^ (key>>2))*64) + ((g ^ (key&3))*16) + wave*4096")
    A("s_lshl_b32 s43, s3, 12")
    A("v_xor_b32 v24, v7, v22")
    A("v_lshlrev_b32 v24, 4, v24")
    A("v_lshl_add_u32 v24, v21, 8, v24")
    A("v_add_u32 v24, s43, v24")
    for t in range(4):
        A(f"v_xor_b32 v25, {t}, v23")
        A(f"v_lshl_add_u32 v{2+t}, v25, 6, v24")
    C("V fragment address: g*1024 + (l&15)*16 + wave*4096")
    A("v_lshlrev_b32 v6, 10, v7")
    A("v_lshl_add_u32 v6, v21, 4, v6")
    A("v_add_u32 v6, s43, v6")
    C("selector masks")
    A("v_mov_b32 v24, 0xffff")
    A("v_mov_b32 v25, 0xffff0000")
    A("v_mov_b32 v13, 0")
    A("v_mov_b32 v14, 0")
    A("v_cmp_eq_u32 vcc, 0, v22"); nop(2); A("v_cndmask_b32 v13, v13, v24, vcc")
    A("v_cmp_eq_u32 vcc, 1, v22"); nop(2); A("v_cndmask_b32 v13, v13, v25, vcc")
    A("v_cmp_eq_u32 vcc, 2, v22"); nop(2); A("v_cndmask_b32 v14, v14, v24, vcc")
    A("v_cmp_eq_u32 vcc, 3, v22"); nop(2); A("v_cndmask_b32 v14, v14, v25, vcc")
    A("v_mov_b32 v15, 0xff800000")
    A("v_mov_b32 v16, 0")
    A("v_mov_b32 v17, 0")
    A("v_mov_b32 v18, 1")
    A(f"v_mov_b32 v19, {FL}")
    for r in range(88, 96): A(f"v_mov_b32 v{r}, 0")
    A(f"s_mov_b32 s{sCS}, {f2u(cs):#x}")
    A("s_barrier")
    A("s_waitcnt lgkmcnt(0)")
    A(f"s_add_u32 s{sTAG}, s{sTAG}, 1")
    A("s_cmp_lg_u32 s3, 0")
    A("s_cbranch_scc1 L_qgather")
    A("v_lshl_add_u32 v24, v7, 3, v23")
    A("v_lshlrev_b32 v24, 5, v24")
    A("v_lshl_add_u32 v24, v22, 3, v24")
    A(f"v_add_u32 v24, {WST}, v24")
    for grp in range(4):
        A(f"s_waitcnt vmcnt({12 - 4*grp})")
        for tq in range(4):
            t = grp * 4 + tq
            A(f"ds_read_b64_tr_b16 v[{112+4*t}:{113+4*t}], v24 offset:{t*1024}")
            A(f"ds_read_b64_tr_b16 v[{114+4*t}:{115+4*t}], v24 offset:{t*1024+128}")
        if grp:
            A("s_waitcnt lgkmcnt(8)")
            u = grp - 1
            for tq in range(4):
                t = u * 4 + tq
                cin = "0" if u == 0 else f"v[{60+4*tq}:{63+4*tq}]"
                A(f"v_mfma_f32_16x16x32_bf16 v[{60+4*tq}:{63+4*tq}], v[{112+4*t}:{115+4*t}], v[{44+4*u}:{47+4*u}], {cin}")
    A("s_waitcnt lgkmcnt(0)")
    for tq in range(4):
        t = 12 + tq
        A(f"v_mfma_f32_16x16x32_bf16 v[{60+4*tq}:{63+4*tq}], v[{112+4*t}:{115+4*t}], v[56:59], v[{60+4*tq}:{63+4*tq}]")
    A("v_lshlrev_b32 v25, 14, v22")
    A("v_lshl_add_u32 v25, v7, 4, v25")
    A(f"s_lshl_b32 s41, s{sHKV}, 11")
    A("s_lshl_b32 s42, s40, 6")
    A("s_add_u32 s41, s41, s42")
    A(f"s_add_u32 s41, s41, {QOFF}")
    A("v_add_u32 v25, s41, v25")
    nop(4)
    for r in range(4):
        A(f"v_add_f32_dpp v{76+r}, v{64+r}, v{60+r} row_shl:4 row_mask:0xf bank_mask:0xf bound_ctrl:1")
    for r in range(4):
        A(f"v_add_f32_dpp v{76+r}, v{68+r}, v{76+r} row_shl:8 row_mask:0xf bank_mask:0xf bound_ctrl:1")
    for r in range(4):
        A(f"v_add_f32_dpp v{76+r}, v{72+r}, v{76+r} row_shl:12 row_mask:0xf bank_mask:0xf bound_ctrl:1")
    A("v_cvt_pk_bf16_f32 v80, v76, v77")
    A(f"v_mov_b32 v81, s{sTAG}")
    A("v_cvt_pk_bf16_f32 v82, v78, v79")
    A(f"v_mov_b32 v83, s{sTAG}")
    A("s_mov_b32 exec_lo, 0x000f000f")
    A("s_mov_b32 exec_hi, 0x000f000f")
    A(f"global_store_dwordx4 v25, v[80:83], s[{sWS}:{sWS+1}] sc1")
    A("s_mov_b64 exec, -1")
    stamp(1)
    lab("L_qgather")
    C("---- every consumer wave gathers q of its (batch, kv head): tagged granules")
    A("v_lshlrev_b32 v24, 9, v23")
    A("v_lshl_add_u32 v24, v22, 7, v24")
    A("v_lshl_add_u32 v24, v7, 5, v24")
    A(f"s_lshl_b32 s41, s{sPAIR}, 11")
    A(f"s_add_u32 s41, s41, {QOFF}")
    A("v_add_u32 v24, s41, v24")
    A(f"s_mov_b32 s44, {spin}")
    lab("L_qpoll")
    A(f"global_load_dwordx4 v[44:47], v24, s[{sWS}:{sWS+1}] sc1")
    A(f"global_load_dwordx4 v[48:51], v24, s[{sWS}:{sWS+1}] offset:16 sc1")
    A("s_sub_u32 s44, s44, 1")
    A("s_cbranch_scc1 L_qdone")
    A("s_waitcnt vmcnt(0)")
    A(f"v_xor_b32 v25, s{sTAG}, v45")
    A(f"v_xor_b32 v26, s{sTAG}, v47")
    A(f"v_xor_b32 v27, s{sTAG}, v49")
    A(f"v_xor_b32 v20, s{sTAG}, v51")
    A("v_or3_b32 v25, v25, v26, v27")
    A("v_or_b32 v25, v25, v20")
    A("v_cmp_ne_u32 vcc, 0, v25")
    A("s_cbranch_vccnz L_qpoll")
    lab("L_qdone")
    A("s_waitcnt vmcnt(0)")
    for t in range(4):
        for e in range(4):
            A(f"v_mov_b32_dpp v{28+4*t+e}, v{44+2*e} quad_perm:[{t},{t},{t},{t}] row_mask:0xf bank_mask:0xf")
    stamp(2)
    C("---- prefetch this wave's 16 rows x 128 columns of wo")
    A(f"s_lshl_b32 s40, s{sHKV}, 2")
    A(f"s_add_u32 s40, s40, s{sB}")
    A("s_lshl_b32 s41, s40, 7")
    A(f"s_lshr_b32 s42, s{sSPL}, 2")
    A("s_lshl_b32 s45, s42, 6")
    A("s_add_u32 s41, s41, s45")
    A("s_lshr_b32 s45, s3, 1")
    A("s_lshl_b32 s45, s45, 5")
    A("s_add_u32 s41, s41, s45")
    A("s_and_b32 s45, s3, 1")
    A("s_lshl_b32 s45, s45, 2")
    A("s_add_u32 s41, s41, s45")
    A("s_lshl_b32 s41, s41, 10")
    A(f"s_and_b32 s46, s{sSPL}, 3")
    A("s_lshl_b32 s45, s46, 8")
    A("s_add_u32 s41, s41, s45")
    A("v_lshlrev_b32 v24, 10, v7")
    A("v_lshl_add_u32 v24, v21, 4, v24")
    A("v_add_u32 v24, s41, v24")
    for tau in range(4):
        if tau: A("v_add_u32 v24, 0x2000, v24")
        A(f"global_load_dwordx4 v[{96+4*tau}:{99+4*tau}], v24, s[{sWO}:{sWO+1}] {wflags}")
    C("---- main loop over 64-key blocks; this wave takes 16 keys of each")
    A("s_mov_b32 s47, 0")
    A("s_mov_b32 s48, 0")
    A("s_mov_b32 s49, 0")
    lab("L_blk")
    for t in range(4): A(f"v_add_u32 v{8+t}, s48, v{2+t}")
    A(f"s_add_u32 s50, s48, {UNIT}")
    A("v_add_u32 v12, s50, v6")
    A("s_cmp_gt_u32 s49, s47")
    A("s_cbranch_scc1 L_kok")
    A(f"s_mov_b32 s44, {spin}")
    lab("L_kpoll")
    A("ds_read_b32 v20, v19")
    A("s_sub_u32 s44, s44, 1")
    A("s_cbranch_scc1 L_kok")
    A("s_waitcnt lgkmcnt(0)")
    A("v_readfirstlane_b32 s49, v20")
    A("s_cmp_gt_u32 s49, s47")
    A("s_cbranch_scc0 L_kpoll")
    lab("L_kok")
    for t in range(4): A(f"ds_read_b128 v[{44+4*t}:{47+4*t}], v{8+t}")
    A("s_lshr_b32 s51, s48, 12")
    A("s_add_u32 s47, s47, 1")
    A("v_add_u32 v21, s51, v19")
    for t in range(4):
        A(f"s_waitcnt lgkmcnt({3-t})")
        cin = "0" if t == 0 else "v[76:79]"
        A(f"v_mfma_f32_16x16x32_bf16 v[76:79], v[{44+4*t}:{47+4*t}], v[{28+4*t}:{31+4*t}], {cin}")
    A("s_mov_b64 exec, 1")
    A("ds_add_u32 v21, v18 offset:4")
    A("s_mov_b64 exec, -1")
    A("s_cmp_gt_u32 s49, s47")
    A("s_cbranch_scc1 L_vok")
    nop(3)
    A("v_max3_f32 v20, v76, v77, v78")
    A("v_max_f32 v20, v20, v79")
    A("v_cmp_gt_f32 vcc, v20, v15")
    A("s_cbranch_vccz L_nomax1")
    A("s_mov_b32 s52, 1")
    A("s_branch L_newmax")
    lab("L_nomax1")
    def softmax():
        for r in range(4): A(f"v_fma_f32 v{76+r}, v{76+r}, s{sCS}, -v16")
        for r in range(4): A(f"v_exp_f32 v{76+r}, v{76+r}")
        nop(1)
        for r in range(4): A(f"v_cvt_pk_bf16_f32 v{24+r}, v{76+r}, v{76+r}")
        A("v_add_f32 v76, v76, v77")
        A("v_add_f32 v78, v78, v79")
        for r in range(4):
            A(f"v_and_b32 v{80+2*r}, v{24+r}, v13")
            A(f"v_and_b32 v{81+2*r}, v{24+r}, v14")
        A("v_add_f32 v76, v76, v78")
        A("v_add_f32 v17, v17, v76")
    softmax()
    A(f"s_mov_b32 s44, {spin}")
    lab("L_vpoll")
    A("ds_read_b32 v20, v19")
    A("s_sub_u32 s44, s44, 1")
    A("s_cbranch_scc1 L_vok1")
    A("s_waitcnt lgkmcnt(0)")
    A("v_readfirstlane_b32 s49, v20")
    A("s_cmp_gt_u32 s49, s47")
    A("s_cbranch_scc0 L_vpoll")
    lab("L_vok1")
    for tau in range(4): A(f"ds_read_b128 v[{60+4*tau}:{63+4*tau}], v12 offset:{tau*256}")
    A("s_branch L_pv")
    lab("L_vok")
    for tau in range(4): A(f"ds_read_b128 v[{60+4*tau}:{63+4*tau}], v12 offset:{tau*256}")
    A("v_max3_f32 v20, v76, v77, v78")
    A("v_max_f32 v20, v20, v79")
    A("v_cmp_gt_f32 vcc, v20, v15")
    A("s_cbranch_vccz L_nomax2")
    A("s_mov_b32 s52, 0")
    lab("L_newmax")
    C("running max rose for some head: take the true max over the 16 keys and rescale")
    A("v_mov_b32 v24, v20")
    nop(2)
    A("v_permlane16_swap_b32 v20, v24")
    nop(1)
    A("v_max_f32 v20, v20, v24")
    A("v_mov_b32 v24, v20")
    nop(2)
    A("v_permlane32_swap_b32 v20, v24")
    nop(1)
    A("v_max3_f32 v20, v20, v24, v15")
    A("v_sub_f32 v24, v15, v20")
    A(f"v_mul_f32 v24, s{sCS}, v24")
    A("v_exp_f32 v24, v24")
    A("v_mov_b32 v15, v20")
    A(f"v_mul_f32 v16, s{sCS}, v20")
    A("v_mul_f32 v17, v17, v24")
    for r in range(88, 96): A(f"v_mul_f32 v{r}, v{r}, v24")
    A("s_cmp_eq_u32 s52, 1")
    A("s_cbranch_scc1 L_nomax1")
    lab("L_nomax2")
    softmax()
    lab("L_pv")
    A("s_add_u32 s47, s47, 1")
    A(f"s_add_u32 s48, s48, {2*UNIT}")
    A(f"s_and_b32 s48, s48, {RING-1}")
    for tau in range(4):
        A(f"s_waitcnt lgkmcnt({3-tau})")
        A(f"v_mfma_f32_16x16x16_bf16 v[88:91], v[{60+4*tau}:{61+4*tau}], v[{80+2*tau}:{81+2*tau}], v[88:91]")
        A(f"v_mfma_f32_16x16x16_bf16 v[92:95], v[{62+4*tau}:{63+4*tau}], v[{80+2*tau}:{81+2*tau}], v[92:95]")
    A("s_mov_b64 exec, 1")
    A("ds_add_u32 v21, v18 offset:8")
    A("s_mov_b64 exec, -1")
    A(f"s_cmp_lt_u32 s47, {2*NB}")
    A("s_cbranch_scc1 L_blk")
    stamp(3)
    C("---- combine the four waves' partial results through LDS")
    A("v_mov_b32 v24, v17")
    A("v_lshlrev_b32 v20, 4, v0")
    A("s_lshl_b32 s43, s3, 11")
    A("v_permlane16_swap_b32 v17, v24")
    A(f"s_add_u32 s43, s43, {WST}")
    A("v_add_f32 v17, v17, v24")
    A("v_mov_b32 v24, v17")
    A("v_add_u32 v25, s43, v20")
    A("v_lshlrev_b32 v26, 3, v23")
    A("v_permlane32_swap_b32 v17, v24")
    A("s_lshl_b32 s43, s3, 5")
    A("v_add_f32 v17, v17, v24")
    A(f"s_add_u32 s43, s43, {WST+8192}")
    A("v_add_u32 v27, s43, v26")
    A("ds_write_b128 v25, v[88:91]")
    A("ds_write_b128 v25, v[92:95] offset:1024")
    A("ds_write_b64 v27, v[16:17]")
    A("s_and_b32 s43, s3, 1")
    A("s_lshl_b32 s43, s43, 10")
    A(f"s_add_u32 s43, s43, {WST}")
    A("v_add_u32 v25, s43, v20")
    A(f"v_add_u32 v27, {WST+8192}, v26")
    A("s_waitcnt lgkmcnt(0)")
    A("s_barrier")
    A("s_cmp_eq_u32 s3, 3")
    A("s_cbranch_scc1 L_h1")
    for w in range(4): A(f"ds_read_b64 v[{44+2*w}:{45+2*w}], v27 offset:{w*32}")
    for w in range(4): A(f"ds_read_b128 v[{60+4*w}:{63+4*w}], v25 offset:{w*2048}")
    A("v_lshlrev_b32 v26, 9, v23")
    A("v_lshl_add_u32 v26, v7, 7, v26")
    A("v_lshl_add_u32 v26, v22, 4, v26")
    A("s_lshl_b32 s41, s2, 12")
    A(f"s_add_u32 s41, s41, {OPOFF}")
    A("s_lshl_b32 s45, s3, 6")
    A("s_add_u32 s45, s45, s41")
    A(f"s_and_b32 s53, s{sTAG}, 0xff")
    A("s_waitcnt lgkmcnt(4)")
    A("v_max3_f32 v20, v44, v46, v48")
    A("v_max_f32 v20, v20, v50")
    for w in range(4): A(f"v_sub_f32 v{52+w}, v{44+2*w}, v20")
    for w in range(4): A(f"v_exp_f32 v{52+w}, v{52+w}")
    A("s_cmp_eq_u32 s3, 2")
    A("s_cbranch_scc1 L_pubml")
    A("v_add_u32 v26, s45, v26")
    A("v_mov_b32 v27, 0xffffff00")
    A("s_waitcnt lgkmcnt(0)")
    for r in range(4): A(f"v_mul_f32 v{76+r}, v{60+r}, v52")
    for w in range(1, 4):
        for r in range(4): A(f"v_fmac_f32 v{76+r}, v{60+4*w+r}, v{52+w}")
    for r in range(4): A(f"v_and_or_b32 v{76+r}, v{76+r}, v27, s53")
    A(f"global_store_dwordx4 v26, v[76:79], s[{sWS}:{sWS+1}] sc1")
    A("s_branch L_h1")
    lab("L_pubml")
    A("v_mul_f32 v77, v45, v52")
    A("v_fmac_f32 v77, v47, v53")
    A("v_fmac_f32 v77, v49, v54")
    A("v_fmac_f32 v77, v51, v55")
    A("v_mov_b32 v76, v20")
    A(f"v_mov_b32 v78, s{sTAG}")
    A(f"v_mov_b32 v79, s{sTAG}")
    A("v_lshlrev_b32 v26, 4, v23")
    A("v_add_u32 v26, s41, v26")
    A("s_mov_b64 exec, 0x1111")
    A(f"global_store_dwordx4 v26, v[76:79], s[{sWS}:{sWS+1}] offset:2048 sc1")
    A("s_mov_b64 exec, -1")
    A("s_waitcnt lgkmcnt(0)")
    lab("L_h1")
    stamp(4)
    C("---- hand-off 1: gather the 8 splits x 4 batches of this wave's 16 rows of one head")
    A("v_lshlrev_b32 v24, 18, v23")
    A("v_lshl_add_u32 v24, v22, 12, v24")
    A(f"s_lshl_b32 s41, s{sHKV}, 15")
    A(f"s_add_u32 s41, s41, {OPOFF}")
    A(f"s_lshl_b32 s45, s{sB}, 4")
    A("s_add_u32 s45, s45, s41")
    A("v_add_u32 v26, s45, v24")
    A(f"s_lshl_b32 s45, s{sB}, 9")
    A("s_add_u32 s41, s41, s45")
    A("s_lshl_b32 s45, s42, 8")
    A("s_add_u32 s41, s41, s45")
    A("s_lshl_b32 s45, s3, 6")
    A("s_add_u32 s41, s41, s45")
    A("v_lshl_add_u32 v24, v7, 4, v24")
    A("v_add_u32 v24, s41, v24")
    A("v_add_u32 v25, 0x4000, v24")
    A("v_add_u32 v27, 0x4000, v26")
    A(f"s_and_b32 s53, s{sTAG}, 0xff")
    A(f"s_mov_b32 s44, {spin}")
    lab("L_h1poll")
    A(f"global_load_dwordx4 v[44:47], v26, s[{sWS}:{sWS+1}] offset:2048 sc1")
    A(f"global_load_dwordx4 v[48:51], v27, s[{sWS}:{sWS+1}] offset:2048 sc1")
    A(f"global_load_dwordx4 v[52:55], v24, s[{sWS}:{sWS+1}] sc1")
    A(f"global_load_dwordx4 v[56:59], v25, s[{sWS}:{sWS+1}] sc1")
    A("s_sub_u32 s44, s44, 1")
    A("s_cbranch_scc1 L_h1done")
    A("s_waitcnt vmcnt(0)")
    for r in range(8): A(f"v_xor_b32 v{60+r}, s53, v{52+r}")
    A("v_or3_b32 v60, v60, v61, v62")
    A("v_or3_b32 v63, v63, v64, v65")
    A("v_or3_b32 v60, v60, v66, v67")
    A(f"v_xor_b32 v61, s{sTAG}, v46")
    A(f"v_xor_b32 v62, s{sTAG}, v50")
    A("v_or_b32 v60, v60, v63")
    A("v_and_b32 v60, 0xff, v60")
    A("v_or3_b32 v60, v60, v61, v62")
    A("v_cmp_ne_u32 vcc, 0, v60")
    A("s_cbranch_vccnz L_h1poll")
    lab("L_h1done")
    A("s_waitcnt vmcnt(0)")
    stamp(5)
    A("v_max_f32 v20, v44, v48")
    nop(2)
    A("v_max_f32_dpp v20, v20, v20 quad_perm:[1,0,3,2] row_mask:0xf bank_mask:0xf")
    nop(2)
    A("v_max_f32_dpp v20, v20, v20 quad_perm:[2,3,0,1] row_mask:0xf bank_mask:0xf")
    A("v_sub_f32 v44, v44, v20")
    A("v_sub_f32 v48, v48, v20")
    A("v_exp_f32 v44, v44")
    A("v_exp_f32 v48, v48")
    nop(1)
    A("v_mul_f32 v20, v44, v45")
    A("v_fmac_f32 v20, v48, v49")
    for r in range(4): A(f"v_mul_f32 v{60+r}, v{52+r}, v44")
    A("v_add_f32_dpp v20, v20, v20 quad_perm:[1,0,3,2] row_mask:0xf bank_mask:0xf")
    for r in range(4): A(f"v_fmac_f32 v{60+r}, v{56+r}, v48")
    A("v_add_f32_dpp v20, v20, v20 quad_perm:[2,3,0,1] row_mask:0xf bank_mask:0xf")
    for r in range(4): A(f"v_add_f32_dpp v{60+r}, v{60+r}, v{60+r} quad_perm:[1,0,3,2] row_mask:0xf bank_mask:0xf")
    A("v_rcp_f32 v20, v20")
    for r in range(4): A(f"v_add_f32_dpp v{60+r}, v{60+r}, v{60+r} quad_perm:[2,3,0,1] row_mask:0xf bank_mask:0xf")
    for r in range(4): A(f"v_mul_f32 v{60+r}, v{60+r}, v20")
    for r in range(4): A(f"v_cvt_pk_bf16_f32 v{60+r}, v{60+r}, v{60+r}")
    for r in range(4):
        A(f"v_and_b32 v{80+2*r}, v{60+r}, v13")
        A(f"v_and_b32 v{81+2*r}, v{60+r}, v14")
    A("v_lshlrev_b32 v20, 4, v0")
    A("s_lshl_b32 s43, s3, 11")
    for tau in range(4):
        c0 = "0" if tau == 0 else "v[88:91]"
        c1 = "0" if tau == 0 else "v[92:95]"
        A(f"v_mfma_f32_16x16x16_bf16 v[88:91], v[{96+4*tau}:{97+4*tau}], v[{80+2*tau}:{81+2*tau}], {c0}")
        A(f"v_mfma_f32_16x16x16_bf16 v[92:95], v[{98+4*tau}:{99+4*tau}], v[{80+2*tau}:{81+2*tau}], {c1}")
    C("second scratch area (ring slot 0 is free by now)")
    A("v_add_u32 v25, s43, v20")
    A("s_and_b32 s43, s3, 1")
    A("s_lshl_b32 s43, s43, 10")
    A("v_add_u32 v27, s43, v20")
    A("v_lshlrev_b32 v26, 9, v23")
    A("v_lshl_add_u32 v26, v7, 7, v26")
    A("v_lshl_add_u32 v26, v22, 4, v26")
    A("s_lshl_b32 s41, s46, 6")
    A("ds_write_b128 v25, v[88:91]")
    A("ds_write_b128 v25, v[92:95] offset:1024")
    A("s_lshl_b32 s45, s40, 1")
    A("s_add_u32 s41, s41, s45")
    A("s_add_u32 s41, s41, s42")
    A("s_lshl_b32 s41, s41, 11")
    A("s_lshl_b32 s45, s3, 6")
    A("s_add_u32 s41, s41, s45")
    A(f"s_add_u32 s41, s41, {P2OFF}")
    A("v_add_u32 v26, s41, v26")
    A("s_waitcnt lgkmcnt(0)")
    A("s_barrier")
    A("s_cmp_eq_u32 s3, 3")
    A("s_cbranch_scc1 L_fin")
    A("s_cmp_eq_u32 s3, 2")
    A("s_cbranch_scc1 L_h2")
    for w in range(4): A(f"ds_read_b128 v[{60+4*w}:{63+4*w}], v27 offset:{w*2048}")
    A("v_mov_b32 v27, 0xffffff00")
    A("s_waitcnt lgkmcnt(2)")
    for r in range(4): A(f"v_add_f32 v{60+r}, v{60+r}, v{64+r}")
    A("s_waitcnt lgkmcnt(0)")
    for r in range(4): A(f"v_add_f32 v{68+r}, v{68+r}, v{72+r}")
    for r in range(4): A(f"v_add_f32 v{60+r}, v{60+r}, v{68+r}")
    for r in range(4): A(f"v_and_or_b32 v{60+r}, v{60+r}, v27, s53")
    A(f"global_store_dwordx4 v26, v[60:63], s[{sWS}:{sWS+1}] sc1")
    A("s_branch L_fin")
    lab("L_h2")
    stamp(6)
    C("---- hand-off 2: sum 64 row-slices for 8 outputs of one batch")
    A("v_lshrrev_b32 v24, 1, v0")
    A("v_lshlrev_b32 v24, 11, v24")
    A("v_and_b32 v25, 1, v0")
    A("v_lshl_add_u32 v24, v25, 4, v24")
    A("s_lshr_b32 s41, s2, 6")
    A("s_lshl_b32 s41, s41, 17")
    A("s_and_b32 s45, s2, 63")
    A("s_lshl_b32 s45, s45, 5")
    A("s_add_u32 s41, s41, s45")
    A(f"s_add_u32 s41, s41, {P2OFF}")
    A("v_add_u32 v24, s41, v24")
    A("v_add_u32 v25, 0x10000, v24")
    A(f"s_mov_b32 s44, {spin}")
    lab("L_h2poll")
    A(f"global_load_dwordx4 v[52:55], v24, s[{sWS}:{sWS+1}] sc1")
    A(f"global_load_dwordx4 v[56:59], v25, s[{sWS}:{sWS+1}] sc1")
    A("s_sub_u32 s44, s44, 1")
    A("s_cbranch_scc1 L_h2done")
    A("s_waitcnt vmcnt(0)")
    for r in range(8): A(f"v_xor_b32 v{60+r}, s53, v{52+r}")
    A("v_or3_b32 v60, v60, v61, v62")
    A("v_or3_b32 v63, v63, v64, v65")
    A("v_or3_b32 v60, v60, v66, v67")
    A("v_or_b32 v60, v60, v63")
    A("v_and_b32 v60, 0xff, v60")
    A("v_cmp_ne_u32 vcc, 0, v60")
    A("s_cbranch_vccnz L_h2poll")
    lab("L_h2done")
    A("s_waitcnt vmcnt(0)")
    stamp(7)
    for r in range(4): A(f"v_add_f32 v{52+r}, v{52+r}, v{56+r}")
    for dpp in ("quad_perm:[2,3,0,1]", "row_ror:4", "row_ror:8"):
        for r in range(4): A(f"v_add_f32_dpp v{52+r}, v{52+r}, v{52+r} {dpp} row_mask:0xf bank_mask:0xf")
    for sw in ("v_permlane16_swap_b32", "v_permlane32_swap_b32"):
        for r in range(4): A(f"v_mov_b32 v{56+r}, v{52+r}")
        for r in range(4): A(f"{sw} v{52+r}, v{56+r}")
        for r in range(4): A(f"v_add_f32 v{52+r}, v{52+r}, v{56+r}")
    A("s_bfe_u32 s41, s2, 0x20004")
    A("s_lshl_b32 s41, s41, 10")
    for r in range(4): A(f"v_mov_b32_dpp v{56+r}, v{52+r} quad_perm:[1,0,3,2] row_mask:0xf bank_mask:0xf")
    A("s_lshr_b32 s45, s2, 6")
    A("s_lshl_b32 s45, s45, 8")
    A("s_add_u32 s41, s41, s45")
    A("s_bfe_u32 s45, s2, 0x20002")
    A("s_lshl_b32 s45, s45, 6")
    A("s_add_u32 s41, s41, s45")
    A("s_and_b32 s45, s2, 3")
    A("s_lshl_b32 s45, s45, 2")
    A("s_add_u32 s41, s41, s45")
    for r in range(4): A(f"v_cvt_pk_bf16_f32 v{52+r}, v{52+r}, v{56+r}")
    A("v_mov_b32 v24, s41")
    A("s_mov_b64 exec, 1")
    for r in range(4): A(f"global_store_dword v24, v{52+r}, s[{sOUT}:{sOUT+1}] offset:{r*16}")
    A("s_cmp_lg_u32 s2, 0")
    A("s_cbranch_scc1 L_fin")
    C("every workgroup has published tagged data by now: advance the hand-off epoch")
    A(f"v_mov_b32 v25, s{sTAG}")
    A("v_mov_b32 v24, 0")
    A(f"global_store_dword v24, v25, s[{sWS}:{sWS+1}] offset:{EPO}")
    lab("L_fin")
    if stamps:
        A("s_waitcnt vmcnt(0)")
        stamp(8)
        A("s_getreg_b32 s59, hwreg(HW_REG_XCC_ID)")
        A("s_waitcnt lgkmcnt(0)")
        if probe is not None:
            pw, pi = probe
            A(f"s_cmp_lg_u32 s3, {pw}")
            A("s_cbranch_scc1 L_end")
            A(f"s_add_u32 s80, s{60+2*pi}, 8000")
            lab("L_probe")
            A("s_memrealtime s[82:83]")
            A("s_waitcnt lgkmcnt(0)")
            A("s_sub_u32 s82, s82, s80")
            A("s_cmp_lt_i32 s82, 0")
            A("s_cbranch_scc1 L_probe")
            A("s_endpgm")
        A("s_mul_i32 s41, s2, 5")
        A("s_add_u32 s41, s41, s3")
        A("s_lshl_b32 s41, s41, 6")
        A(f"s_add_u32 s41, s41, {STOFF}")
        A("s_mov_b64 exec, 1")
        A("v_mov_b32 v24, s41")
        for i in range(9):
            A(f"v_mov_b32 v25, s{60+2*i}")
            A(f"global_store_dword v24, v25, s[{sWS}:{sWS+1}] offset:{4*i}")
        A("v_mov_b32 v25, s59")
        A(f"global_store_dword v24, v25, s[{sWS}:{sWS+1}] offset:36")
    A("s_endpgm")

    lab("L_loader")
    if prio: A(f"s_setprio {prio}")
    A("v_lshrrev_b32 v7, 4, v0")
    A("v_and_b32 v8, 15, v0")
    for i in range(4):
        A(f"v_add_u32 v9, {4*i}, v7")
        A("v_xor_b32 v9, v9, v8")
        A("v_lshlrev_b32 v9, 4, v9")
        A(f"v_lshl_add_u32 v{2+i}, v7, 8, v9")
    A("v_lshlrev_b32 v6, 4, v0")
    A("v_lshlrev_b32 v10, 2, v0")
    A(f"v_add_u32 v10, {FL}, v10")
    A("v_mov_b32 v11, 0")
    A("ds_write_b32 v10, v11")
    A(f"v_mov_b32 v10, {FL}")
    A(f"s_lshl_b32 s40, s{sPAIR}, 22")
    A("s_mov_b32 s41, 0")
    A("s_mov_b32 s42, 0")
    A("s_mov_b32 s43, 0")
    A("s_waitcnt lgkmcnt(0)")
    A(f"s_mov_b32 s20, s{sK}"); A(f"s_mov_b32 s21, s{sK+1}"); A("s_mov_b32 s22, 0x8000000"); A("s_mov_b32 s23, 0x20000")
    A(f"s_mov_b32 s24, s{sV}"); A(f"s_mov_b32 s25, s{sV+1}"); A("s_mov_b32 s26, 0x8000000"); A("s_mov_b32 s27, 0x20000")
    def addr():
        A("s_lshl_b32 s46, s41, 3")
        A(f"s_add_u32 s46, s46, s{sSPL}")
        A(f"s_lshr_b32 s47, s46, {G.bit_length()-1}")
        A(f"s_and_b32 s48, s46, {G-1}")
        if rrot:
            A(f"s_mul_i32 s49, s{sPAIR}, {rrot}")
            A("s_add_u32 s47, s47, s49")
            A(f"s_and_b32 s47, s47, {R-1}")
        if grot:
            A(f"s_mul_i32 s49, s{sPAIR}, {grot}")
            A("s_add_u32 s48, s48, s49")
            A(f"s_and_b32 s48, s48, {G-1}")
        A(f"s_mul_i32 s47, s47, {span}")
        A(f"s_mul_i32 s48, s48, {piece*1024}")
        A("s_add_u32 s44, s47, s48")
        A("s_add_u32 s44, s44, s40")
    grp = min(piece, 4)
    pubpos = (15 + depth) % 16
    publag = (15 + depth) // 16
    uid = [0]
    def unit(which, first_iter, u_static=None):
        srd = "s[20:23]" if which == 0 else "s[24:27]"
        k = uid[0]; uid[0] += 1
        if u_static is None or u_static >= ring:
            A("s_waitcnt lgkmcnt(0)")
            A("v_readfirstlane_b32 s50, v12")
            A("s_cmp_ge_u32 s50, s51")
            A(f"s_cbranch_scc1 L_free{k}")
            A(f"s_mov_b32 s52, {spin}")
            lab(f"L_wfree{k}")
            A("ds_read_b32 v12, v13 offset:4")
            A("s_sub_u32 s52, s52, 1")
            A(f"s_cbranch_scc1 L_free{k}")
            A("s_waitcnt lgkmcnt(0)")
            A("v_readfirstlane_b32 s50, v12")
            A("s_cmp_ge_u32 s50, s51")
            A(f"s_cbranch_scc0 L_wfree{k}")
            lab(f"L_free{k}")
        for i in range(16):
            pi, kk = divmod(i, piece)
            if i % grp == 0:
                A(f"s_add_u32 s45, s44, {pi*pstride + kk*1024}")
                A(f"s_add_u32 m0, s42, {i*1024}")
            g_idx = None if u_static is None else u_static * 16 + i
            if g_idx is None or g_idx >= depth:
                A(f"s_waitcnt vmcnt({depth-1})")
            elif i % grp == 0:
                nop(1)
            va = f"v{2+(i&3)}" if which == 0 else "v6"
            off = (i % grp) * 1024
            A(f"buffer_load_dwordx4 {va}, {srd}, s45 offen offset:{off} {flags} lds")
            if i == pubpos and (u_static is None or u_static >= publag):
                A("s_add_u32 s43, s43, 1")
                A("v_mov_b32 v11, s43")
                A("ds_write_b32 v10, v11")
            if i == 11 and (u_static is None or u_static + 1 >= ring):
                A(f"s_add_u32 s50, s42, {UNIT}")
                A(f"s_and_b32 s50, s50, {RING-1}")
                A("s_lshr_b32 s50, s50, 12")
                A("v_add_u32 v13, s50, v10")
                A("s_lshl_b32 s51, s41, 1")
                A(f"s_add_u32 s51, s51, {which+1}")
                A(f"s_lshr_b32 s51, s51, {ring.bit_length()-1}")
                A("s_lshl_b32 s51, s51, 2")
                A("ds_read_b32 v12, v13 offset:4")
            if u_static is not None and u_static * 16 + i == min(depth, 16) - 1:
                A("s_barrier")
        A(f"s_add_u32 s42, s42, {UNIT}")
        A(f"s_and_b32 s42, s42, {RING-1}")
    npeel = ring // 2
    for n in range(npeel):
        addr()
        unit(0, True, 2*n)
        unit(1, True, 2*n+1)
        A("s_add_u32 s41, s41, 1")
    lab("L_ld")
    addr()
    unit(0, False)
    unit(1, False)
    A("s_add_u32 s41, s41, 1")
    A(f"s_cmp_lt_u32 s41, {NB}")
    A("s_cbranch_scc1 L_ld")
    total = 2 * NB
    published = total - publag
    for u in range(published, total):
        left = (total - 1 - u) * 16
        A(f"s_waitcnt vmcnt({left})")
        A(f"v_mov_b32 v11, {u+1}")
        A("ds_write_b32 v10, v11")
    A("s_waitcnt lgkmcnt(0)")
    if stamps:
        stamp(8)
        A("s_waitcnt lgkmcnt(0)")
        A("s_mul_i32 s41, s2, 5")
        A("s_add_u32 s41, s41, 4")
        A("s_lshl_b32 s41, s41, 6")
        A(f"s_add_u32 s41, s41, {STOFF}")
        A("s_mov_b64 exec, 1")
        A("v_mov_b32 v24, s41")
        A("v_mov_b32 v25, s60")
        A(f"global_store_dword v24, v25, s[{sWS}:{sWS+1}]")
        A("v_mov_b32 v25, s76")
        A(f"global_store_dword v24, v25, s[{sWS}:{sWS+1}] offset:32")
    lab("L_end")
    A("s_endpgm")

    src = HEAD + f"; @launch grid=(256,1,1) block=(320,1,1) lds={LDS}\n"
    src += f""".amdgcn_target "amdgcn-amd-amdhsa--gfx950"
.text
.globl {KN}
.p2align 8
.type {KN},@function
{KN}:
""" + "\n".join(L) + f"""
.section .rodata,"a"
.p2align 6
.amdhsa_kernel {KN}
  .amdhsa_next_free_vgpr 176
  .amdhsa_next_free_sgpr 96
  .amdhsa_accum_offset 176
  .amdhsa_group_segment_fixed_size 0
  .amdhsa_kernarg_size 64
  .amdhsa_user_sgpr_count 2
  .amdhsa_user_sgpr_kernarg_segment_ptr 1
  .amdhsa_system_sgpr_workgroup_id_x 1
  .amdhsa_float_denorm_mode_32 3
.end_amdhsa_kernel
"""
    return src

if __name__ == "__main__":
    kw = eval("dict(" + (sys.argv[2] if len(sys.argv) > 2 else "") + ")")
    open(sys.argv[1], "w").write(gen(**kw))
```

```python
import math, sys, struct

KN = "standalone__gqa_block_cached__decode_kernel"
HEAD = """; Kernarg layout for this problem (64 bytes, ptrs only, base s[0:1]):
"""

def f2u(x):
    return struct.unpack("<I", struct.pack("<f", x))[0]

def gen(depth=20, UL=16, piece=4, pstride=32768, rrot=2, grot=1, flags="nt", wflags="nt",
        stamps=False, spin=1 << 17, prio=3, probe=None, psleep=0, qdelay=3, S=None, cah=4, bar_at=0,
        pw2=0, outf='', sync_at=0, pdelay=0, wodelay=0, peel=0, pw1=0, pwat=0, diag=0, h1ack=0, h2ack=0, pdelay2=0):
    dyn = S is not None
    if probe is not None: stamps = True
    L = []
    def A(s): L.append("    " + s)
    def lab(s): L.append(s + ":")
    def nop(n): A(f"s_nop {n-1}")
    def C(s): L.append("    ; " + s)
    ldf = stf = "sc1"

    UNIT = UL * 1024
    US = UNIT.bit_length() - 1
    CW = UL // 4
    RING = 128 * 1024
    ring = RING // UNIT
    NB = 4096 // UL
    NBW = NB // 8
    WST = RING
    FL = RING + 16384
    QCNT = FL + 128
    PWF = FL + 132
    MARK = 0x5a
    QB = FL + 512
    MBOX = QB + 1024
    LDS = MBOX + 1024
    EPO = 0
    CTOFF = 4096
    QOFF = 64 << 10
    R1OFF = 1 << 20
    R2OFF = 3 << 19
    STOFF = 4 << 20
    cs = (128 ** -0.5) * math.log2(math.e)

    npiece = UL // piece
    span = npiece * pstride
    R = (4 << 20) // span
    G = pstride // (piece * 1024)
    assert R * G == NB and R >= 1
    if dyn:
        assert 2 * S - cah > ring + 2 and S + NB - 8 * S < 256
    else:
        assert NBW < 255

    sX, sK, sV, sWQ, sWO, sOUT, sDBG, sWS = 4, 6, 8, 10, 12, 14, 16, 18
    WS = f"s[{sWS}:{sWS+1}]"
    sPAIR, sSPL, sB, sHKV = 32, 33, 34, 35
    sTAG, sCS, sT8 = 36, 37, 53
    sHEAD, sHALF = 40, 42
    def stamp(idx):
        if stamps:
            A(f"s_memrealtime s[{60+2*idx}:{61+2*idx}]")
    def dump_stamps():
        A("s_getreg_b32 s59, hwreg(HW_REG_XCC_ID)")
        A("s_waitcnt lgkmcnt(0)")
        A("s_mul_i32 s41, s2, 6")
        A("s_add_u32 s41, s41, s3")
        A("s_lshl_b32 s41, s41, 6")
        A(f"s_add_u32 s41, s41, {STOFF}")
        A("s_mov_b64 exec, 1")
        A("v_mov_b32 v24, s41")
        for i in range(12):
            A(f"v_mov_b32 v25, s{60+2*i}")
            A(f"global_store_dword v24, v25, {WS} offset:{4*i}")
        A("v_mov_b32 v25, s59")
        A(f"global_store_dword v24, v25, {WS} offset:60")

    def vec_coords(iw):
        A("v_bfe_u32 v24, v0, 3, 2")
        A("v_bfe_u32 v25, v0, 2, 1")
        A("v_lshrrev_b32 v26, 5, v0")
        A(f"v_add_u32 v26, {iw}, v26")
        A("v_lshlrev_b32 v25, 10, v25")
        A("v_lshl_add_u32 v25, v24, 8, v25")
        A("v_lshl_add_u32 v25, v26, 6, v25")
        A("v_and_b32 v27, 3, v0")
        A("v_lshl_add_u32 v25, v27, 4, v25")
        A("v_and_b32 v27, 7, v0")
        A("v_lshlrev_b32 v27, 4, v27")
    def r1_addr(dst):
        A(f"v_lshl_add_u32 v{dst}, v26, 14, v27")
        A(f"v_lshl_add_u32 v{dst}, v24, 12, v{dst}")
        A(f"s_lshl_b32 s54, s{sB}, 3")
        A(f"s_add_u32 s54, s54, s{sSPL}")
        A(f"s_lshl_b32 s41, s{sHKV}, 16")
        A("s_lshl_b32 s45, s54, 7")
        A("s_add_u32 s41, s41, s45")
        A(f"s_add_u32 s41, s41, {R1OFF}")
        A(f"v_add_u32 v{dst}, s41, v{dst}")
    def r2_addr(dst):
        A(f"v_lshl_add_u32 v{dst}, v26, 15, v27")
        A(f"v_lshl_add_u32 v{dst}, v24, 13, v{dst}")
        A(f"s_lshl_b32 s41, s{sB}, 10")
        A("s_and_b32 s45, s2, 63")
        A("s_add_u32 s41, s41, s45")
        A("s_lshl_b32 s41, s41, 7")
        A(f"s_add_u32 s41, s41, {R2OFF}")
        A(f"v_add_u32 v{dst}, s41, v{dst}")

    C("workgroups past the 256 that carry work leave at once")
    A("s_cmp_ge_u32 s2, 256")
    A("s_cbranch_scc1 L_end")
    A("s_load_dwordx16 s[4:19], s[0:1], 0")
    stamp(0)
    A("v_lshrrev_b32 v1, 6, v0")
    A("v_and_b32 v0, 63, v0")
    A(f"s_lshr_b32 s{sPAIR}, s2, 3")
    A("v_readfirstlane_b32 s3, v1")
    A(f"s_and_b32 s{sSPL}, s2, 7")
    A(f"s_lshr_b32 s{sB}, s2, 6")
    A(f"s_and_b32 s{sHKV}, s{sPAIR}, 7")
    A("s_cmp_eq_u32 s3, 4")
    A("s_cbranch_scc1 L_loader")
    A("s_cmp_eq_u32 s3, 5")
    A("s_cbranch_scc1 L_claimer")

    A("v_lshrrev_b32 v7, 4, v0")
    A("v_and_b32 v21, 15, v0")
    A("v_and_b32 v22, 3, v0")
    A("v_bfe_u32 v23, v0, 2, 2")
    A("s_cmp_lg_u32 s3, 0")
    A("s_cbranch_scc1 L_noq")
    C("---- wave 0: partial q = x[:, 128b:128b+128] @ wq[128b:128b+128, 64 columns] for all four batches")
    A("s_mov_b32 s30, 0x400000"); A("s_mov_b32 s31, 0x20000")
    A(f"s_lshl_b32 s41, s{sB}, 20")
    A(f"s_lshl_b32 s42, s{sHKV}, 10")
    A("s_add_u32 s41, s41, s42")
    A(f"s_lshl_b32 s42, s{sSPL}, 7")
    A("s_add_u32 s41, s41, s42")
    A("v_lshrrev_b32 v24, 3, v0")
    A("v_lshlrev_b32 v24, 13, v24")
    A("v_and_b32 v25, 7, v0")
    A("v_lshl_add_u32 v24, v25, 4, v24")
    A("v_lshlrev_b32 v25, 10, v22")
    A("v_lshl_add_u32 v25, v7, 4, v25")
    A(f"s_lshl_b32 s42, s{sB}, 8")
    A("v_add_u32 v25, s42, v25")
    A(f"s_mov_b32 m0, {WST}")
    A("s_waitcnt lgkmcnt(0)")
    A(f"s_mov_b32 s28, s{sWQ}"); A(f"s_mov_b32 s29, s{sWQ+1}")
    for i in range(16):
        if i:
            A(f"s_mov_b32 m0, {WST + i*1024}")
            A(f"s_add_u32 s41, s41, {8*8192}")
        if not diag & 2: A(f"buffer_load_dwordx4 v24, s[28:31], s41 offen {wflags} lds")
        if i == 3:
            for u in range(4):
                A(f"global_load_dwordx4 v[{44+4*u}:{47+4*u}], v25, s[{sX}:{sX+1}] offset:{u*64}")
    A("s_branch L_st")
    lab("L_noq")
    A("s_cmp_lg_u32 s3, 1")
    A("s_cbranch_scc1 L_st")
    if dyn:
        C("---- wave 1 of the workgroup with split 0 clears its pair's work counter before its q part is published")
        A(f"s_cmp_lg_u32 s{sSPL}, 0")
        A("s_cbranch_scc1 L_st")
        A(f"s_lshl_b32 s42, s{sPAIR}, 8")
        A(f"s_add_u32 s42, s42, {CTOFF}")
        A("v_lshl_add_u32 v26, v0, 2, s42")
        A("v_mov_b32 v80, 0")
        A("s_waitcnt lgkmcnt(0)")
        A("s_mov_b32 exec_hi, 0")
        A(f"global_store_dword v26, v80, {WS} sc1")
        A("s_mov_b64 exec, -1")
    lab("L_st")
    A("s_waitcnt lgkmcnt(0)")
    A(f"s_load_dword s{sTAG}, {WS}, {EPO}")
    stamp(9)
    A("s_barrier")
    C("K fragment addresses: key*256 + ((t ^ (key>>2))*64) + ((g ^ (key&3))*16) + 4096*(wave's slice)")
    A(f"s_and_b32 s43, s3, {CW-1}")
    A("s_lshl_b32 s43, s43, 12")
    A("v_xor_b32 v24, v7, v22")
    A("v_lshlrev_b32 v24, 4, v24")
    A("v_lshl_add_u32 v24, v21, 8, v24")
    A("v_add_u32 v24, s43, v24")
    for t in range(4):
        A(f"v_xor_b32 v25, {t}, v23")
        A(f"v_lshl_add_u32 v{2+t}, v25, 6, v24")
    C("V fragment address: g*1024 + (l&15)*16 + 4096*(wave's slice)")
    A("v_lshlrev_b32 v6, 10, v7")
    A("v_lshl_add_u32 v6, v21, 4, v6")
    A("v_add_u32 v6, s43, v6")
    C("selector masks")
    A("v_mov_b32 v24, 0xffff")
    A("v_mov_b32 v25, 0xffff0000")
    A("v_mov_b32 v13, 0")
    A("v_mov_b32 v14, 0")
    A("v_cmp_eq_u32 vcc, 0, v22"); nop(2); A("v_cndmask_b32 v13, v13, v24, vcc")
    A("v_cmp_eq_u32 vcc, 1, v22"); nop(2); A("v_cndmask_b32 v13, v13, v25, vcc")
    A("v_cmp_eq_u32 vcc, 2, v22"); nop(2); A("v_cndmask_b32 v14, v14, v24, vcc")
    A("v_cmp_eq_u32 vcc, 3, v22"); nop(2); A("v_cndmask_b32 v14, v14, v25, vcc")
    A("v_mov_b32 v15, 0xff800000")
    A("v_mov_b32 v16, 0xff800000")
    A("v_mov_b32 v17, 0")
    A("v_mov_b32 v18, 1")
    A(f"v_mov_b32 v19, {FL}")
    for r in range(88, 96): A(f"v_mov_b32 v{r}, 0")
    A(f"s_mov_b32 s{sCS}, {f2u(cs):#x}")
    A("s_waitcnt lgkmcnt(0)")
    A(f"s_add_u32 s{sTAG}, s{sTAG}, 1")
    A(f"s_and_b32 s{sT8}, s{sTAG}, 0xff")
    A("s_cmp_eq_u32 s3, 0")
    A("s_cbranch_scc1 L_qprod")
    A("s_cmp_lg_u32 s3, 1")
    A("s_cbranch_scc1 L_qgather")
    A("s_waitcnt vmcnt(0)")
    A(f"ds_write_b32 v19, v18 offset:{PWF-FL}")
    A("s_branch L_qgather")
    lab("L_qprod")
    A("v_lshl_add_u32 v24, v7, 3, v23")
    A("v_lshlrev_b32 v24, 7, v24")
    A("v_lshl_add_u32 v24, v22, 3, v24")
    A(f"v_add_u32 v24, {WST}, v24")
    for t in range(4):
        A(f"s_waitcnt vmcnt({12 - 4*t})")
        for ct in range(4):
            r = 112 + 16*t + 4*ct
            A(f"ds_read_b64_tr_b16 v[{r}:{r+1}], v24 offset:{t*4096 + ct*32}")
            A(f"ds_read_b64_tr_b16 v[{r+2}:{r+3}], v24 offset:{t*4096 + ct*32 + 512}")
        if t:
            A("s_waitcnt lgkmcnt(8)")
            u = t - 1
            for ct in range(4):
                r = 112 + 16*u + 4*ct
                cin = "0" if u == 0 else f"v[{60+4*ct}:{63+4*ct}]"
                A(f"v_mfma_f32_16x16x32_bf16 v[{60+4*ct}:{63+4*ct}], v[{r}:{r+3}], v[{44+4*u}:{47+4*u}], {cin}")
    stamp(10)
    A("s_waitcnt lgkmcnt(0)")
    for ct in range(4):
        r = 112 + 48 + 4*ct
        A(f"v_mfma_f32_16x16x32_bf16 v[{60+4*ct}:{63+4*ct}], v[{r}:{r+3}], v[56:59], v[{60+4*ct}:{63+4*ct}]")
    A("v_lshlrev_b32 v25, 16, v22")
    A("v_lshl_add_u32 v25, v23, 6, v25")
    A("v_lshl_add_u32 v25, v7, 4, v25")
    A(f"s_lshl_b32 s41, s{sHKV}, 13")
    A(f"s_lshl_b32 s42, s{sB}, 11")
    A("s_add_u32 s41, s41, s42")
    A(f"s_lshl_b32 s42, s{sSPL}, 8")
    A("s_add_u32 s41, s41, s42")
    A(f"s_add_u32 s41, s41, {QOFF}")
    A("v_add_u32 v25, s41, v25")
    A("v_mov_b32 v27, 0xffffff00")
    for ct in range(1, 4):
        for r in range(4):
            A(f"v_mov_b32_dpp v{60+r}, v{60+4*ct+r} quad_perm:[0,1,2,3] row_mask:0xf bank_mask:{1<<ct:#x}")
    for r in range(4): A(f"v_and_or_b32 v{60+r}, v{60+r}, v27, s{sT8}")
    A(f"s_mov_b32 s44, {spin}")
    lab("L_pww")
    A(f"ds_read_b32 v20, v19 offset:{PWF-FL}")
    A("s_sub_u32 s44, s44, 1")
    A("s_cbranch_scc1 L_pww_x")
    A("s_waitcnt lgkmcnt(0)")
    A("v_readfirstlane_b32 s49, v20")
    A("s_cmp_lg_u32 s49, 0")
    A("s_cbranch_scc0 L_pww")
    lab("L_pww_x")
    if not diag & 4: A(f"global_store_dwordx4 v25, v[60:63], {WS} {stf}")
    stamp(1)
    lab("L_qgather")
    C("---- consumer wave w sums the four partials of head w's q, rounds to bf16 and shares it through LDS")
    A("v_and_b32 v25, 31, v0")
    A("v_lshlrev_b32 v24, 4, v25")
    A("v_lshrrev_b32 v26, 5, v0")
    A("v_lshl_add_u32 v24, v26, 12, v24")
    A(f"s_lshl_b32 s41, s{sPAIR}, 13")
    A("s_lshl_b32 s42, s3, 9")
    A("s_add_u32 s41, s41, s42")
    A(f"s_add_u32 s41, s41, {QOFF}")
    A("v_add_u32 v148, s41, v24")
    A("s_lshl_b32 s42, s3, 8")
    A(f"s_add_u32 s42, s42, {QB}")
    A("v_lshl_add_u32 v149, v25, 3, s42")
    C("---- addresses of the final phase")
    vOSC, vMLW, vH1O, vS2W, vS2R, vR2P, vH2A, vH2B, vOUT, vMSK, vWO = range(112, 123)
    A(f"s_lshl_b32 s{sHEAD}, s{sHKV}, 2")
    A(f"s_lshr_b32 s45, s{sSPL}, 1")
    A(f"s_add_u32 s{sHEAD}, s{sHEAD}, s45")
    A(f"s_and_b32 s{sHALF}, s{sSPL}, 1")
    A("v_lshlrev_b32 v20, 4, v0")
    A("s_lshl_b32 s43, s3, 11")
    A(f"v_add_u32 v{vS2W}, s43, v20")
    A(f"v_add_u32 v{vOSC}, {WST}, v{vS2W}")
    A("s_lshl_b32 s43, s3, 5")
    A(f"s_add_u32 s43, s43, {WST+8192}")
    A(f"v_lshl_add_u32 v{vMLW}, v23, 3, s43")
    A("s_and_b32 s43, s3, 1")
    A("s_lshl_b32 s43, s43, 1")
    vec_coords("s43")
    A(f"v_mov_b32 v{vS2R}, v25")
    r2_addr(vR2P)
    A("v_lshl_add_u32 v24, v23, 3, v22")
    A("v_lshlrev_b32 v24, 7, v24")
    A("v_lshl_add_u32 v24, v7, 4, v24")
    A(f"s_lshl_b32 s41, s{sHEAD}, 2")
    A(f"s_lshl_b32 s45, s{sHALF}, 1")
    A("s_add_u32 s41, s41, s45")
    A("s_lshr_b32 s45, s3, 1")
    A("s_add_u32 s41, s41, s45")
    A("s_lshl_b32 s46, s41, 5")
    A("s_lshl_b32 s41, s41, 12")
    A("s_and_b32 s45, s3, 1")
    A("s_lshl_b32 s43, s45, 2")
    A("s_add_u32 s46, s46, s43")
    A("s_lshl_b32 s45, s45, 6")
    A("s_add_u32 s41, s41, s45")
    A(f"s_add_u32 s41, s41, {R1OFF}")
    A(f"v_add_u32 v{vH1O}, s41, v24")
    A("s_lshl_b32 s46, s46, 10")
    A(f"s_lshl_b32 s45, s{sB}, 8")
    A("s_add_u32 s46, s46, s45")
    A(f"v_lshlrev_b32 v{vWO}, 10, v7")
    A(f"v_lshl_add_u32 v{vWO}, v21, 4, v{vWO}")
    A(f"v_add_u32 v{vWO}, s46, v{vWO}")
    A("v_lshrrev_b32 v24, 1, v0")
    A("v_lshlrev_b32 v24, 7, v24")
    A("v_and_b32 v25, 1, v0")
    A("v_lshl_add_u32 v24, v25, 4, v24")
    A("s_and_b32 s41, s2, 63")
    A("s_lshl_b32 s41, s41, 13")
    A(f"s_lshl_b32 s45, s{sB}, 5")
    A("s_add_u32 s41, s41, s45")
    A(f"s_add_u32 s41, s41, {R2OFF}")
    A(f"v_add_u32 v{vH2A}, s41, v24")
    A(f"v_add_u32 v{vH2B}, 0x1000, v{vH2A}")
    A("s_bfe_u32 s41, s2, 0x20002")
    A("s_lshl_b32 s41, s41, 10")
    A("s_bfe_u32 s45, s2, 0x20004")
    A("s_lshl_b32 s45, s45, 8")
    A("s_add_u32 s41, s41, s45")
    A("s_and_b32 s45, s2, 3")
    A("s_lshl_b32 s45, s45, 6")
    A("s_add_u32 s41, s41, s45")
    A(f"s_lshl_b32 s45, s{sB}, 2")
    A("s_add_u32 s41, s41, s45")
    A("v_and_b32 v24, 1, v7")
    A("v_lshlrev_b32 v24, 5, v24")
    A("v_lshrrev_b32 v25, 1, v7")
    A("v_lshl_add_u32 v24, v25, 4, v24")
    A(f"v_add_u32 v{vOUT}, s41, v24")
    A(f"v_mov_b32 v{vMSK}, 0xffffff00")
    A("s_mov_b32 s57, 0x0c04000c")
    A("s_mov_b32 s58, 0x04020100")
    A(f"s_mov_b32 s44, {spin}")
    def ready_wait(lbl, n):
        lab(lbl)
        A("ds_read_b32 v20, v19")
        A("s_sub_u32 s44, s44, 1")
        A(f"s_cbranch_scc1 {lbl}_x")
        A("s_waitcnt lgkmcnt(0)")
        A("v_readfirstlane_b32 s49, v20")
        A(f"s_cmp_ge_u32 s49, {n}")
        A(f"s_cbranch_scc0 {lbl}")
        lab(f"{lbl}_x")
    if qdelay: ready_wait("L_qdel", qdelay * 16 // UL)
    def poll(lbl, loads, tagged):
        lab(lbl)
        if stamps and lbl == "L_h1poll":
            A("s_mov_b32 s78, s82")
            stamp(11)
            A("s_waitcnt lgkmcnt(0)")
        for ld in loads: A(ld)
        A("s_sub_u32 s44, s44, 1")
        A(f"s_cbranch_scc1 {lbl}_x")
        A("s_waitcnt vmcnt(0)")
        t = 68
        if len(tagged) == 8:
            a = tagged
            A(f"v_xor_b32 v{t}, s{sT8}, v{a[0]}")
            for j in range(1, 8): A(f"v_xor_b32 v{t+j}, s{sT8}, v{a[j]}")
            A(f"v_or3_b32 v{t}, v{t}, v{t+1}, v{t+2}")
            A(f"v_or3_b32 v{t+3}, v{t+3}, v{t+4}, v{t+5}")
            A(f"v_or3_b32 v{t}, v{t}, v{t+6}, v{t+7}")
            A(f"v_or_b32 v{t}, v{t}, v{t+3}")
        else:
            A(f"v_xor_b32 v{t}, s{sT8}, v{tagged[0]}")
            A(f"v_xor_b32 v{t+1}, s{sT8}, v{tagged[1]}")
            A(f"v_or_b32 v{t}, v{t}, v{t+1}")
        A(f"v_and_b32 v{t}, 0xff, v{t}")
        A(f"v_cmp_ne_u32 vcc, 0, v{t}")
        if len(tagged) == 8:
            A("s_and_b64 exec, exec, vcc")
        else:
            A("s_or_b32 s45, vcc_lo, vcc_hi")
            A("s_lshr_b32 s46, s45, 16")
            A("s_or_b32 s45, s45, s46")
            A("s_pack_ll_b32_b16 s46, s45, s45")
            A("s_mov_b32 s47, s46")
            A("s_and_b64 exec, exec, s[46:47]")
        if psleep:
            A(f"s_cbranch_scc0 {lbl}_x")
            A(f"s_sleep {psleep}")
            A(f"s_branch {lbl}")
        else:
            A(f"s_cbranch_scc1 {lbl}")
        lab(f"{lbl}_x")
        A("s_mov_b64 exec, -1")
        A("s_waitcnt vmcnt(0)")
    if not diag & 4: poll("L_qpoll", [f"global_load_dwordx4 v[44:47], v148, {WS} {ldf}",
                     f"global_load_dwordx4 v[48:51], v148, {WS} offset:2048 {ldf}"], list(range(44, 52)))
    for r in range(4): A(f"v_add_f32 v{44+r}, v{44+r}, v{48+r}")
    for r in range(4): A(f"v_mov_b32 v{48+r}, v{44+r}")
    for r in range(4): A(f"v_permlane32_swap_b32 v{44+r}, v{48+r}")
    for r in range(4): A(f"v_add_f32 v{44+r}, v{44+r}, v{48+r}")
    A("v_cvt_pk_bf16_f32 v44, v44, v45")
    A("v_cvt_pk_bf16_f32 v45, v46, v47")
    A("ds_write_b64 v149, v[44:45]")
    A("v_lshlrev_b32 v24, 8, v23")
    A("v_lshl_add_u32 v24, v7, 4, v24")
    A(f"v_add_u32 v24, {QB}, v24")
    A("s_mov_b64 exec, 1")
    A(f"ds_add_u32 v19, v18 offset:{QCNT-FL}")
    A("s_mov_b64 exec, -1")
    lab("L_qw")
    A(f"ds_read_b32 v20, v19 offset:{QCNT-FL}")
    A("s_sub_u32 s44, s44, 1")
    A("s_cbranch_scc1 L_qw_x")
    A("s_waitcnt lgkmcnt(0)")
    A("v_readfirstlane_b32 s49, v20")
    A("s_cmp_ge_u32 s49, 4")
    A("s_cbranch_scc0 L_qw")
    lab("L_qw_x")
    for t in range(4): A(f"ds_read_b128 v[{28+4*t}:{31+4*t}], v24 offset:{t*64}")
    stamp(2)
    def wo_loads():
        for tau in range(4):
            if diag & 1: break
            if tau: A(f"v_add_u32 v{vWO}, 0x2000, v{vWO}")
            A(f"global_load_dwordx4 v[{96+4*tau}:{99+4*tau}], v{vWO}, s[{sWO}:{sWO+1}] {wflags}")
    if not wodelay:
        C("---- prefetch this wave's 16 rows x 128 columns of wo")
        wo_loads()
    C("---- main loop; this wave takes 16 keys of each of its blocks")
    step = 2 * (4 // CW)
    if CW == 4:
        A("s_mov_b32 s47, 0")
        A("s_mov_b32 s48, 0")
    else:
        A("s_and_b32 s47, s3, 2")
        A(f"s_lshl_b32 s48, s47, {US}")
    A("s_mov_b32 s49, 0")
    A("s_mov_b32 s55, 0")
    lab("L_blk")
    for t in range(4): A(f"v_add_u32 v{8+t}, s48, v{2+t}")
    A(f"s_add_u32 s50, s48, {UNIT}")
    A("v_add_u32 v12, s50, v6")
    A("s_cmp_gt_u32 s49, s47")
    A("s_cbranch_scc1 L_kok")
    A(f"s_mov_b32 s44, {spin}")
    lab("L_kpoll")
    A("s_lshr_b32 s55, s55, 16")
    A("s_sub_u32 s55, s55, 1")
    A("s_cmp_ge_u32 s47, s55")
    A("s_cbranch_scc1 L_loopend")
    A("ds_read_b32 v20, v19")
    A("s_sub_u32 s44, s44, 1")
    A("s_cbranch_scc1 L_loopend")
    A("s_waitcnt lgkmcnt(0)")
    A("v_readfirstlane_b32 s55, v20")
    A("s_and_b32 s49, s55, 0xffff")
    A("s_cmp_gt_u32 s49, s47")
    A("s_cbranch_scc0 L_kpoll")
    lab("L_kok")
    for t in range(4): A(f"ds_read_b128 v[{44+4*t}:{47+4*t}], v{8+t}")
    A(f"s_lshr_b32 s51, s48, {US-2}")
    A("s_add_u32 s47, s47, 1")
    A("v_add_u32 v21, s51, v19")
    for t in range(4):
        A(f"s_waitcnt lgkmcnt({3-t})")
        cin = "0" if t == 0 else "v[76:79]"
        A(f"v_mfma_f32_16x16x32_bf16 v[76:79], v[{44+4*t}:{47+4*t}], v[{28+4*t}:{31+4*t}], {cin}")
    A("s_mov_b64 exec, 1")
    A("ds_add_u32 v21, v18 offset:4")
    A("s_mov_b64 exec, -1")
    A("s_cmp_gt_u32 s49, s47")
    A("s_cbranch_scc1 L_vok")
    nop(3)
    A("v_max3_f32 v20, v76, v77, v78")
    A("v_max_f32 v20, v20, v79")
    A("v_cmp_gt_f32 vcc, v20, v15")
    A("s_cbranch_vccz L_nomax1")
    A("s_mov_b32 s52, 1")
    A("s_branch L_newmax")
    lab("L_nomax1")
    def softmax():
        for r in range(4): A(f"v_fma_f32 v{76+r}, v{76+r}, s{sCS}, -v16")
        for r in range(4): A(f"v_exp_f32 v{76+r}, v{76+r}")
        nop(1)
        for r in range(4): A(f"v_cvt_pk_bf16_f32 v{24+r}, v{76+r}, v{76+r}")
        A("v_add_f32 v76, v76, v77")
        A("v_add_f32 v78, v78, v79")
        for r in range(4):
            A(f"v_and_b32 v{80+2*r}, v{24+r}, v13")
            A(f"v_and_b32 v{81+2*r}, v{24+r}, v14")
        A("v_add_f32 v76, v76, v78")
        A("v_add_f32 v17, v17, v76")
    softmax()
    A(f"s_mov_b32 s44, {spin}")
    lab("L_vpoll")
    A("ds_read_b32 v20, v19")
    A("s_sub_u32 s44, s44, 1")
    A("s_cbranch_scc1 L_vok1")
    A("s_waitcnt lgkmcnt(0)")
    A("v_readfirstlane_b32 s55, v20")
    A("s_and_b32 s49, s55, 0xffff")
    A("s_cmp_gt_u32 s49, s47")
    A("s_cbranch_scc0 L_vpoll")
    lab("L_vok1")
    for tau in range(4): A(f"ds_read_b128 v[{60+4*tau}:{63+4*tau}], v12 offset:{tau*256}")
    A("s_branch L_pv")
    lab("L_vok")
    for tau in range(4): A(f"ds_read_b128 v[{60+4*tau}:{63+4*tau}], v12 offset:{tau*256}")
    A("v_max3_f32 v20, v76, v77, v78")
    A("v_max_f32 v20, v20, v79")
    A("v_cmp_gt_f32 vcc, v20, v15")
    A("s_cbranch_vccz L_nomax2")
    A("s_mov_b32 s52, 0")
    lab("L_newmax")
    C("the running max rose for some head: take the true max over the 16 keys and rescale")
    A("v_mov_b32 v24, v20")
    nop(2)
    A("v_permlane16_swap_b32 v20, v24")
    nop(1)
    A("v_max_f32 v20, v20, v24")
    A("v_mov_b32 v24, v20")
    nop(2)
    A("v_permlane32_swap_b32 v20, v24")
    nop(1)
    A("v_max3_f32 v20, v20, v24, v15")
    A("v_sub_f32 v24, v15, v20")
    A(f"v_mul_f32 v24, s{sCS}, v24")
    A("v_exp_f32 v24, v24")
    A("v_mov_b32 v15, v20")
    A(f"v_mul_f32 v16, s{sCS}, v20")
    A("v_mul_f32 v17, v17, v24")
    for r in range(88, 96): A(f"v_mul_f32 v{r}, v{r}, v24")
    A("s_cmp_eq_u32 s52, 1")
    A("s_cbranch_scc1 L_nomax1")
    lab("L_nomax2")
    softmax()
    lab("L_pv")
    A(f"s_add_u32 s47, s47, {step-1}")
    A(f"s_add_u32 s48, s48, {step*UNIT}")
    A(f"s_and_b32 s48, s48, {RING-1}")
    for tau in range(4):
        A(f"s_waitcnt lgkmcnt({3-tau})")
        A(f"v_mfma_f32_16x16x16_bf16 v[88:91], v[{60+4*tau}:{61+4*tau}], v[{80+2*tau}:{81+2*tau}], v[88:91]")
        A(f"v_mfma_f32_16x16x16_bf16 v[92:95], v[{62+4*tau}:{63+4*tau}], v[{80+2*tau}:{81+2*tau}], v[92:95]")
    A("s_mov_b64 exec, 1")
    A("ds_add_u32 v21, v18 offset:8")
    A("s_mov_b64 exec, -1")
    if wodelay:
        A("s_lshr_b32 s50, s47, 2")
        A(f"s_cmp_lg_u32 s50, {wodelay * 16 // UL // 4}")
        A("s_cbranch_scc1 L_blk")
        if CW == 4:
            A("s_bitcmp1_b32 s47, 1")
            A("s_cbranch_scc1 L_blk")
        C("---- prefetch this wave's 16 rows x 128 columns of wo")
        wo_loads()
    A("s_branch L_blk")
    lab("L_loopend")
    if sync_at:
        A(f"s_add_u32 s90, s60, {sync_at + 1023}")
        A("s_and_b32 s90, s90, 0xfffffc00")
        lab("L_sync")
        A("s_memrealtime s[92:93]")
        A("s_waitcnt lgkmcnt(0)")
        A("s_sub_u32 s92, s92, s90")
        A("s_cmp_lt_i32 s92, 0")
        A("s_cbranch_scc1 L_sync")
    stamp(3)
    C("---- hand the four waves' partial results to the publishing waves through LDS")
    A("v_mov_b32 v24, v17")
    A(f"ds_write_b128 v{vOSC}, v[88:91]")
    A(f"s_mov_b32 s44, {spin}")
    A("v_permlane16_swap_b32 v17, v24")
    A(f"ds_write_b128 v{vOSC}, v[92:95] offset:1024")
    A("v_add_f32 v17, v17, v24")
    A("v_mov_b32 v24, v17")
    nop(2)
    A("v_permlane32_swap_b32 v17, v24")
    nop(1)
    A("v_add_f32 v17, v17, v24")
    A(f"ds_write_b64 v{vMLW}, v[16:17]")
    A("s_waitcnt lgkmcnt(0)")
    A("s_barrier")
    stamp(4)
    C("---- hand-off 1: gather the 8 splits x 4 batches of this wave's 16 rows of one head")
    if h1ack: A("s_barrier")
    if pdelay: A(f"s_sleep {pdelay}")
    poll("L_h1poll", [f"global_load_dwordx4 v[52:55], v{vH1O}, {WS} {ldf}",
                      f"global_load_dwordx4 v[56:59], v{vH1O}, {WS} offset:512 {ldf}"], [55, 59])
    stamp(5)
    if stamps: A(f"s_sub_u32 s80, {spin}, s44")
    A("v_max_f32 v20, v55, v59")
    A("v_perm_b32 v44, v53, v52, s57")
    A("v_perm_b32 v45, v57, v56, s57")
    A("v_max_f32_dpp v20, v20, v20 quad_perm:[1,0,3,2] row_mask:0xf bank_mask:0xf")
    A("v_perm_b32 v44, v54, v44, s58")
    A("v_perm_b32 v45, v58, v45, s58")
    A("v_max_f32_dpp v20, v20, v20 quad_perm:[2,3,0,1] row_mask:0xf bank_mask:0xf")
    A("v_sub_f32 v46, v55, v20")
    A("v_sub_f32 v47, v59, v20")
    A("v_exp_f32 v46, v46")
    A("v_exp_f32 v47, v47")
    A(f"s_mov_b32 s44, {spin}")
    A("v_mul_f32 v60, v52, v46")
    A("v_add_f32 v20, v46, v47")
    A("v_mul_f32 v61, v53, v46")
    A("v_mul_f32 v62, v54, v46")
    A("v_mul_f32 v63, v44, v46")
    A("v_add_f32_dpp v20, v20, v20 quad_perm:[1,0,3,2] row_mask:0xf bank_mask:0xf")
    A("v_fmac_f32 v60, v56, v47")
    A("v_fmac_f32 v61, v57, v47")
    A("v_add_f32_dpp v20, v20, v20 quad_perm:[2,3,0,1] row_mask:0xf bank_mask:0xf")
    A("v_fmac_f32 v62, v58, v47")
    A("v_fmac_f32 v63, v45, v47")
    A("v_rcp_f32 v20, v20")
    for r in range(4): A(f"v_add_f32_dpp v{60+r}, v{60+r}, v{60+r} quad_perm:[1,0,3,2] row_mask:0xf bank_mask:0xf")
    for r in range(4): A(f"v_add_f32_dpp v{60+r}, v{60+r}, v{60+r} quad_perm:[2,3,0,1] row_mask:0xf bank_mask:0xf")
    for r in range(4): A(f"v_mul_f32 v{60+r}, v{60+r}, v20")
    for r in range(4): A(f"v_cvt_pk_bf16_f32 v{60+r}, v{60+r}, v{60+r}")
    for r in range(4):
        A(f"v_and_b32 v{80+2*r}, v{60+r}, v13")
        A(f"v_and_b32 v{81+2*r}, v{60+r}, v14")
        if r:
            tau = r - 1
            c0 = "0" if tau == 0 else "v[88:91]"
            c1 = "0" if tau == 0 else "v[92:95]"
            A(f"v_mfma_f32_16x16x16_bf16 v[88:91], v[{96+4*tau}:{97+4*tau}], v[{80+2*tau}:{81+2*tau}], {c0}")
            A(f"v_mfma_f32_16x16x16_bf16 v[92:95], v[{98+4*tau}:{99+4*tau}], v[{80+2*tau}:{81+2*tau}], {c1}")
    A("v_mfma_f32_16x16x16_bf16 v[88:91], v[108:109], v[86:87], v[88:91]")
    A("v_mfma_f32_16x16x16_bf16 v[92:95], v[110:111], v[86:87], v[92:95]")
    C("second scratch area: the start of the ring is free by now")
    A("s_cmp_ge_u32 s3, 2")
    nop(6)
    A(f"ds_write_b128 v{vS2W}, v[88:91]")
    A(f"ds_write_b128 v{vS2W}, v[92:95] offset:1024")
    A("s_waitcnt lgkmcnt(0)")
    A("s_barrier")
    A("s_cbranch_scc1 L_h2")
    for w in range(4): A(f"ds_read_b128 v[{60+4*w}:{63+4*w}], v{vS2R} offset:{w*2048}")
    A("s_waitcnt lgkmcnt(2)")
    A("v_pk_add_f32 v[60:61], v[60:61], v[64:65]")
    A("v_pk_add_f32 v[62:63], v[62:63], v[66:67]")
    A("s_waitcnt lgkmcnt(0)")
    A("v_pk_add_f32 v[68:69], v[68:69], v[72:73]")
    A("v_pk_add_f32 v[70:71], v[70:71], v[74:75]")
    A("v_pk_add_f32 v[60:61], v[60:61], v[68:69]")
    A("v_pk_add_f32 v[62:63], v[62:63], v[70:71]")
    for r in range(4): A(f"v_and_or_b32 v{60+r}, v{60+r}, v{vMSK}, s{sT8}")
    A(f"global_store_dwordx4 v{vR2P}, v[60:63], {WS} {stf}")
    stamp(6)
    if h2ack:
        if h2ack == 1: A("s_waitcnt vmcnt(0)")
        A("s_barrier")
    A("s_branch L_fin")
    lab("L_h2")
    A("s_cmp_eq_u32 s3, 3")
    A("s_cbranch_scc1 L_fin")
    if h2ack: A("s_barrier")
    if pdelay2: A(f"s_sleep {pdelay2}")
    stamp(6)
    C("---- hand-off 2: sum 64 row-slices for 8 outputs of one batch")
    poll("L_h2poll", [f"global_load_dwordx4 v[52:55], v{vH2A}, {WS} {ldf}",
                      f"global_load_dwordx4 v[56:59], v{vH2B}, {WS} {ldf}"], list(range(52, 60)))
    stamp(7)
    A("v_pk_add_f32 v[52:53], v[52:53], v[56:57]")
    A("v_pk_add_f32 v[54:55], v[54:55], v[58:59]")
    nop(1)
    A("v_permlane32_swap_b32 v52, v53")
    A("v_permlane32_swap_b32 v54, v55")
    nop(1)
    A("v_add_f32 v52, v52, v53")
    A("v_add_f32 v54, v54, v55")
    nop(2)
    A("v_permlane16_swap_b32 v52, v54")
    nop(1)
    A("v_add_f32 v52, v52, v54")
    for dpp in ("quad_perm:[2,3,0,1]", "row_ror:4", "row_ror:8"):
        nop(2)
        A(f"v_add_f32_dpp v52, v52, v52 {dpp} row_mask:0xf bank_mask:0xf")
    A("s_mov_b32 s46, 0x00010001")
    A("s_mov_b32 s47, 0x00010001")
    A("v_mov_b32_dpp v53, v52 quad_perm:[1,0,3,2] row_mask:0xf bank_mask:0xf")
    A("s_mov_b64 exec, s[46:47]")
    A("v_cvt_pk_bf16_f32 v52, v52, v53")
    A(f"global_store_dword v{vOUT}, v52, s[{sOUT}:{sOUT+1}] {outf}")
    A("s_cmp_lg_u32 s2, 0")
    A("s_cbranch_scc1 L_fin")
    C("every workgroup has published tagged data by now: advance the hand-off epoch")
    A("s_mov_b64 exec, 1")
    A(f"v_mov_b32 v25, s{sTAG}")
    A("v_mov_b32 v24, 0")
    A(f"global_store_dword v24, v25, {WS} offset:{EPO}")
    lab("L_fin")
    if stamps:
        A("s_waitcnt vmcnt(0)")
        stamp(8)
        if probe is not None:
            A("s_waitcnt lgkmcnt(0)")
            pw, pi, pT = probe
            A(f"s_cmp_lg_u32 s3, {pw}")
            A("s_cbranch_scc1 L_end")
            A(f"s_add_u32 s90, s{60+2*pi}, {pT}")
            lab("L_probe")
            A("s_memrealtime s[92:93]")
            A("s_waitcnt lgkmcnt(0)")
            A("s_sub_u32 s92, s92, s90")
            A("s_cmp_lt_i32 s92, 0")
            A("s_cbranch_scc1 L_probe")
            A("s_endpgm")
        dump_stamps()
    A("s_endpgm")

    lab("L_loader")
    if prio: A(f"s_setprio {prio}")
    A("v_lshrrev_b32 v7, 4, v0")
    A("v_and_b32 v8, 15, v0")
    for i in range(4):
        A(f"v_add_u32 v9, {4*i}, v7")
        A("v_xor_b32 v9, v9, v8")
        A("v_lshlrev_b32 v9, 4, v9")
        A(f"v_lshl_add_u32 v{2+i}, v7, 8, v9")
    A("v_lshlrev_b32 v6, 4, v0")
    A(f"v_mov_b32 v10, {FL}")
    A(f"s_lshl_b32 s40, s{sPAIR}, 22")
    A("s_mov_b32 s41, 0")
    A("s_mov_b32 s42, 0")
    A(f"s_mov_b32 s43, {0 if peel else -((UL - 1 + depth) // UL)}")
    A("v_mov_b32 v9, 0")
    A("v_mov_b32 v12, 0")
    A("s_mov_b32 s51, 0")
    A(f"v_mov_b32 v13, {FL}")
    A("s_mov_b32 s22, 0x8000000"); A("s_mov_b32 s23, 0x20000")
    A("s_mov_b32 s26, 0x8000000"); A("s_mov_b32 s27, 0x20000")
    def addr(static=True):
        if static:
            A("s_lshl_b32 s46, s41, 3")
            A(f"s_add_u32 s46, s46, s{sSPL}")
        A(f"s_lshr_b32 s47, s46, {G.bit_length()-1}")
        A(f"s_and_b32 s48, s46, {G-1}")
        if rrot:
            A(f"s_mul_i32 s49, s{sPAIR}, {rrot}")
            A("s_add_u32 s47, s47, s49")
            A(f"s_and_b32 s47, s47, {R-1}")
        if grot:
            A(f"s_mul_i32 s49, s{sPAIR}, {grot}")
            A("s_add_u32 s48, s48, s49")
            A(f"s_and_b32 s48, s48, {G-1}")
        A(f"s_mul_i32 s47, s47, {span}")
        A(f"s_mul_i32 s48, s48, {piece*1024}")
        A("s_add_u32 s44, s47, s48")
        A("s_add_u32 s44, s44, s40")
    grp = min(piece, 4)
    pubpos = (UL - 1 + depth) % UL
    publag = (UL - 1 + depth) // UL
    rapos = UL - 5
    assert cah >= publag
    uid = [0]
    def unit(which, u_static=None):
        srd = "s[20:23]" if which == 0 else "s[24:27]"
        k = uid[0]; uid[0] += 1
        if u_static is None or u_static >= ring:
            if which == 1: A("s_waitcnt lgkmcnt(0)")
            A("v_readfirstlane_b32 s50, v12")
            A("s_cmp_ge_u32 s50, s51")
            A(f"s_cbranch_scc1 L_free{k}")
            A(f"s_mov_b32 s52, {spin}")
            lab(f"L_wfree{k}")
            A("ds_read_b32 v12, v13 offset:4")
            A("s_sub_u32 s52, s52, 1")
            A(f"s_cbranch_scc1 L_free{k}")
            A("s_waitcnt lgkmcnt(0)")
            A("v_readfirstlane_b32 s50, v12")
            A("s_cmp_ge_u32 s50, s51")
            A(f"s_cbranch_scc0 L_wfree{k}")
            lab(f"L_free{k}")
        for i in range(UL):
            pi, kk = divmod(i, piece)
            if i % grp == 0:
                A(f"s_add_u32 s45, s44, {pi*pstride + kk*1024}")
                A(f"s_add_u32 m0, s42, {i*1024}")
            g_idx = None if u_static is None else u_static * UL + i
            if g_idx is None or g_idx >= depth:
                A(f"s_waitcnt vmcnt({depth-1})")
            elif i % grp == 0:
                nop(1)
            if g_idx is not None:
                marks = {depth: 1, depth + 15: 2, depth + 31: 3, depth + 63: 4, depth + 95: 5, 127: 6}
                if g_idx in marks: stamp(marks[g_idx])
            va = f"v{2+(i&3)}" if which == 0 else "v6"
            off = (i % grp) * 1024
            A(f"buffer_load_dwordx4 {va}, {srd}, s45 offen offset:{off} {flags} lds")
            if i == pubpos and (u_static is None or u_static >= publag):
                A("s_add_u32 s43, s43, 1")
                A("v_max_i32 v11, s43, v9" if not peel else "v_mov_b32 v11, s43")
                A("ds_write_b32 v10, v11")
            if i == rapos and (u_static is None or u_static + 1 >= ring):
                A(f"s_add_u32 s50, s42, {UNIT}")
                A(f"s_and_b32 s50, s50, {RING-1}")
                A(f"s_lshr_b32 s50, s50, {US-2}")
                A("v_add_u32 v13, s50, v10")
                A("s_lshl_b32 s51, s41, 1")
                A(f"s_add_u32 s51, s51, {which+1}")
                A(f"s_lshr_b32 s51, s51, {ring.bit_length()-1}")
                A(f"s_lshl_b32 s51, s51, {CW.bit_length()-1}")
                A("ds_read_b32 v12, v13 offset:4")
                if which == 1:
                    A("s_lshl_b32 s50, s41, 2")
                    A("v_add_u32 v16, s50, v10")
                    A(f"ds_read_b32 v17, v16 offset:{MBOX-FL+4}")
            if u_static is not None and g_idx == bar_at - 1:
                A("s_barrier")
        A(f"s_add_u32 s42, s42, {UNIT}")
        A(f"s_and_b32 s42, s42, {RING-1}")
    npeel = ring // 2
    assert bar_at <= depth
    addr()
    A("s_waitcnt lgkmcnt(0)")
    A(f"s_mov_b32 s20, s{sK}"); A(f"s_mov_b32 s21, s{sK+1}")
    A(f"s_mov_b32 s24, s{sV}"); A(f"s_mov_b32 s25, s{sV+1}")
    A(f"s_load_dword s{sTAG}, {WS}, {EPO}")
    if bar_at == 0: A("s_barrier")
    if peel:
        for n in range(npeel):
            if n: addr()
            unit(0, 2*n)
            unit(1, 2*n+1)
            A("s_add_u32 s41, s41, 1")
    else:
        assert bar_at == 0
        A("s_branch L_first")
    lab("L_ld")
    if stamps:
        for bi, si in ((1, 1), (2, 2), (3, 3), (4, 4)):
            if peel: break
            A(f"s_cmp_lg_u32 s41, {bi*16//UL}")
            A(f"s_cbranch_scc1 L_nosta{si}")
            stamp(si)
            lab(f"L_nosta{si}")
        A(f"s_cmp_lg_u32 s41, {5*16//UL}")
        A("s_cbranch_scc1 L_nost7")
        stamp(7)
        lab("L_nost7")
        A(f"s_cmp_lg_u32 s41, {NBW//2}")
        A("s_cbranch_scc1 L_nost9")
        stamp(9)
        lab("L_nost9")
    A("s_waitcnt lgkmcnt(0)")
    A("v_readfirstlane_b32 s46, v17")
    A("s_cmp_lg_u32 s46, 0")
    A("s_cbranch_scc1 L_got")
    A(f"s_mov_b32 s52, {spin}")
    lab("L_wmb")
    A(f"ds_read_b32 v17, v16 offset:{MBOX-FL+4}")
    A("s_sub_u32 s52, s52, 1")
    A("s_cbranch_scc1 L_drain")
    A("s_waitcnt lgkmcnt(0)")
    A("v_readfirstlane_b32 s46, v17")
    A("s_cmp_lg_u32 s46, 0")
    A("s_cbranch_scc0 L_wmb")
    lab("L_got")
    A(f"s_cmp_gt_u32 s46, {NB}")
    A("s_cbranch_scc1 L_drain")
    A("s_sub_u32 s46, s46, 1")
    addr(False)
    lab("L_first")
    unit(0)
    unit(1)
    A("s_add_u32 s41, s41, 1")
    A("s_branch L_ld")
    lab("L_drain")
    C("units not yet published; the upper half of the word announces the total (+1)")
    if stamps: A("s_mov_b32 s80, s41")
    A("s_lshl_b32 s50, s41, 17")
    A("s_add_u32 s43, s43, s50")
    A("s_add_u32 s43, s43, 0x10000")
    A("s_mov_b32 s48, 0")
    vec_coords("s48")
    r1_addr(28)
    for j in range(publag - 1, -1, -1):
        A(f"s_waitcnt vmcnt({UL*j})")
        A("s_add_u32 s43, s43, 1")
        A("v_mov_b32 v11, s43")
        A("ds_write_b32 v10, v11")
    stamp(8)
    lab("L_publish")
    C("---- waves 4 and 5 merge the four partial results and publish them (normalised rows + log-sum-exp)")
    A(f"v_add_u32 v25, {WST}, v25")
    A("v_lshlrev_b32 v27, 3, v26")
    A(f"v_add_u32 v27, {WST+8192}, v27")
    A("v_mov_b32 v29, 0xffffff00")
    A("s_mov_b32 s56, 0x07060501")
    A("s_mov_b32 s57, 0x07060502")
    A("s_mov_b32 s58, 0x07060503")
    A("s_waitcnt lgkmcnt(0)")
    A(f"s_add_u32 s{sTAG}, s{sTAG}, 1")
    A(f"s_and_b32 s{sT8}, s{sTAG}, 0xff")
    A("s_barrier")
    for w in range(4): A(f"ds_read_b64 v[{44+2*w}:{45+2*w}], v27 offset:{w*32}")
    for w in range(4): A(f"ds_read_b128 v[{60+4*w}:{63+4*w}], v25 offset:{w*2048}")
    A("s_waitcnt lgkmcnt(4)")
    A("v_max3_f32 v30, v44, v46, v48")
    A("v_max_f32 v30, v30, v50")
    for w in range(4): A(f"v_sub_f32 v{52+2*w}, v{44+2*w}, v30")
    for w in range(4): A(f"v_exp_f32 v{52+2*w}, v{52+2*w}")
    A("s_waitcnt lgkmcnt(0)")
    A("v_mul_f32 v31, v45, v52")
    A("v_pk_mul_f32 v[76:77], v[60:61], v[52:53] op_sel_hi:[1,0]")
    A("v_fmac_f32 v31, v47, v54")
    A("v_pk_mul_f32 v[78:79], v[62:63], v[52:53] op_sel_hi:[1,0]")
    A("v_fmac_f32 v31, v49, v56")
    A("v_pk_fma_f32 v[76:77], v[64:65], v[54:55], v[76:77] op_sel_hi:[1,0,1]")
    A("v_fmac_f32 v31, v51, v58")
    A("v_pk_fma_f32 v[78:79], v[66:67], v[54:55], v[78:79] op_sel_hi:[1,0,1]")
    A("v_rcp_f32 v32, v31")
    A("v_log_f32 v31, v31")
    A("v_pk_fma_f32 v[76:77], v[68:69], v[56:57], v[76:77] op_sel_hi:[1,0,1]")
    A("v_pk_fma_f32 v[78:79], v[70:71], v[56:57], v[78:79] op_sel_hi:[1,0,1]")
    A("v_pk_fma_f32 v[76:77], v[72:73], v[58:59], v[76:77] op_sel_hi:[1,0,1]")
    A("v_pk_fma_f32 v[78:79], v[74:75], v[58:59], v[78:79] op_sel_hi:[1,0,1]")
    A("v_add_f32 v30, v30, v31")
    A("v_pk_mul_f32 v[78:79], v[78:79], v[32:33] op_sel_hi:[1,0]")
    A("v_pk_mul_f32 v[76:77], v[76:77], v[32:33] op_sel_hi:[1,0]")
    A(f"v_and_or_b32 v83, v30, v29, s{sT8}")
    A("v_perm_b32 v82, v78, v79, s58")
    A("v_perm_b32 v80, v76, v79, s56")
    A("v_perm_b32 v81, v77, v79, s57")
    A(f"global_store_dwordx4 v28, v[80:83], {WS} {stf}")
    stamp(11)
    if h1ack:
        if h1ack == 1: A("s_waitcnt vmcnt(0)")
        A("s_barrier")
    if stamps: dump_stamps()
    A("s_endpgm")

    lab("L_claimer")
    SS = S if dyn else NBW + 1
    C("clear the LDS flags; block list: the first steps are fixed, later ones are claimed")
    A("v_lshlrev_b32 v10, 3, v0")
    A(f"v_add_u32 v10, {FL}, v10")
    A("v_mov_b32 v14, 0")
    A("v_mov_b32 v15, 0")
    A("ds_write_b64 v10, v[14:15]")
    for j in range(4):
        A(f"v_lshl_add_u32 v9, v0, 2, {j}")
        A(f"v_lshl_add_u32 v{16+j}, v9, 3, s{sSPL}")
        A(f"v_add_u32 v{16+j}, 1, v{16+j}")
        A(f"v_cmp_gt_u32 vcc, {SS}, v9")
        nop(2)
        A(f"v_cndmask_b32 v{16+j}, v14, v{16+j}, vcc")
    A("v_lshlrev_b32 v10, 4, v0")
    A(f"v_add_u32 v10, {MBOX}, v10")
    A("ds_write_b128 v10, v[16:19]")
    A("s_waitcnt lgkmcnt(0)")
    A("s_barrier")
    A(f"s_load_dword s{sTAG}, {WS}, {EPO}")
    A("s_mov_b32 s48, 2")
    vec_coords("s48")
    r1_addr(28)
    if pw1 or pw2:
        C("bring this workgroup's hand-off lines on chip ahead of time (written with the previous tag), staggered")
        r2_addr(34)
        A("v_subrev_u32 v35, 0x8000, v28")
        A("v_subrev_u32 v36, 0x10000, v34")
        A(f"v_mov_b32 v4, {FL}")
        A(f"s_and_b32 s43, s{sPAIR}, 15")
        A(f"s_mul_i32 s43, s43, {pwat * 16 // UL}")
        A(f"s_add_u32 s43, s43, {10 * 16 // UL}")
        A(f"s_mov_b32 s44, {spin}")
        lab("L_pwd")
        A("ds_read_b32 v6, v4")
        A("s_sub_u32 s44, s44, 1")
        A("s_cbranch_scc1 L_pwd_x")
        A("s_waitcnt lgkmcnt(0)")
        A("v_readfirstlane_b32 s45, v6")
        A("s_cmp_ge_u32 s45, s43")
        A("s_cbranch_scc0 L_pwd")
        lab("L_pwd_x")
        A("s_waitcnt lgkmcnt(0)")
        for r in range(4): A(f"v_mov_b32 v{40+r}, s{sTAG}")
        if pw1:
            A(f"global_store_dwordx4 v28, v[40:43], {WS} {stf}")
            A(f"global_store_dwordx4 v35, v[40:43], {WS} {stf}")
        if pw2:
            A(f"global_store_dwordx4 v34, v[40:43], {WS} {stf}")
            A(f"global_store_dwordx4 v36, v[40:43], {WS} {stf}")
        A("s_waitcnt vmcnt(0)")
    if dyn:
        A(f"s_lshl_b32 s42, s{sPAIR}, 8")
        A(f"s_add_u32 s42, s42, {CTOFF}")
        A("v_mov_b32 v2, s42")
        A("v_mov_b32 v3, 1")
        A(f"v_mov_b32 v4, {FL}")
        A(f"v_mov_b32 v5, {MBOX + 4*S}")
        A(f"s_mov_b32 s43, {2*S - cah}")
        A("s_mov_b64 exec, 1")
        A(f"s_mov_b32 s44, {spin}")
        lab("L_cl")
        A("ds_read_b32 v6, v4")
        A("s_sub_u32 s44, s44, 1")
        A("s_cbranch_scc1 L_cl_x")
        A("s_waitcnt lgkmcnt(0)")
        A("v_readfirstlane_b32 s45, v6")
        A("s_and_b32 s45, s45, 0xffff")
        A("s_cmp_ge_u32 s45, s43")
        A("s_cbranch_scc0 L_cl")
        A(f"global_atomic_add v7, v2, v3, {WS} sc0 sc1")
        A("s_add_u32 s43, s43, 2")
        A("s_waitcnt vmcnt(0)")
        A(f"v_add_u32 v7, {8*S + 1}, v7")
        A("ds_write_b32 v5, v7")
        A("v_readfirstlane_b32 s45, v7")
        A("v_add_u32 v5, 4, v5")
        A(f"s_cmp_gt_u32 s45, {NB}")
        A("s_cbranch_scc0 L_cl")
        lab("L_cl_x")
        A("s_mov_b64 exec, -1")
    A("s_branch L_publish")
    lab("L_end")
    A("s_endpgm")

    src = HEAD + f"; @launch grid=(256,1,1) block=(384,1,1) lds={LDS}\n"
    src += f""".amdgcn_target "amdgcn-amd-amdhsa--gfx950"
.text
.globl {KN}
.p2align 8
.type {KN},@function
{KN}:
""" + "\n".join(L) + f"""
.section .rodata,"a"
.p2align 6
.amdhsa_kernel {KN}
  .amdhsa_next_free_vgpr 176
  .amdhsa_next_free_sgpr 96
  .amdhsa_accum_offset 176
  .amdhsa_group_segment_fixed_size 0
  .amdhsa_kernarg_size 64
  .amdhsa_user_sgpr_count 2
  .amdhsa_user_sgpr_kernarg_segment_ptr 1
  .amdhsa_system_sgpr_workgroup_id_x 1
  .amdhsa_float_denorm_mode_32 3
.end_amdhsa_kernel
"""
    return src

if __name__ == "__main__":
    kw = eval("dict(" + (sys.argv[2] if len(sys.argv) > 2 else "") + ")")
    open(sys.argv[1], "w").write(gen(**kw))
```

```python
import math, sys, struct

KN = "standalone__gqa_block_cached__decode_kernel"
HEAD = """; Kernarg layout for this problem (64 bytes, ptrs only, base s[0:1]):
"""

def f2u(x):
    return struct.unpack("<I", struct.pack("<f", x))[0]

def gen(depth=24, UL=8, piece=4, pstride=32768, rrot=4, grot=1, flags="nt", wflags="nt",
        stamps=False, spin=1 << 17, prio=3, probe=None, psleep=0, qdelay=3, S=56, cah=6, bar_at=0,
        pw2=0, outf='', sync_at=0, pdelay=0, wodelay=0, peel=0, pw1=0, pwat=0, diag=0, h1ack=1, h2ack=1, pdelay2=0, woend=2, satom=2, cts=10, stlbl='L_h1poll', prd=0, t2=0):
    dyn = S is not None
    if probe is not None: stamps = True
    L = []
    def A(s): L.append("    " + s)
    def lab(s): L.append(s + ":")
    def nop(n): A(f"s_nop {n-1}")
    def C(s): L.append("    ; " + s)
    ldf = stf = "sc1"

    UNIT = UL * 1024
    US = UNIT.bit_length() - 1
    CW = UL // 4
    RING = 128 * 1024
    ring = RING // UNIT
    NB = 4096 // UL
    NBW = NB // 8
    WST = RING
    FL = RING + 16384
    QCNT = FL + 128
    PWF = FL + 132
    MARK = 0x5a
    QB = FL + 512
    MBOX = QB + 1024
    LDS = MBOX + 1024
    EPO = 0
    CTOFF = 32768
    QOFF = 64 << 10
    R1OFF = 1 << 20
    R2OFF = 3 << 19
    STOFF = 4 << 20
    cs = (128 ** -0.5) * math.log2(math.e)

    npiece = UL // piece
    span = npiece * pstride
    R = (4 << 20) // span
    G = pstride // (piece * 1024)
    assert R * G == NB and R >= 1
    if dyn:
        assert 2 * S - cah > ring + 2 and S + NB - 8 * S < 256
    else:
        assert NBW < 255

    sX, sK, sV, sWQ, sWO, sOUT, sDBG, sWS = 4, 6, 8, 10, 12, 14, 16, 18
    WS = f"s[{sWS}:{sWS+1}]"
    sPAIR, sSPL, sB, sHKV = 32, 33, 34, 35
    sTAG, sCS, sT8 = 36, 37, 53
    sHEAD, sHALF = 40, 42
    def stamp(idx):
        if stamps:
            A(f"s_memrealtime s[{60+2*idx}:{61+2*idx}]")
    def dump_stamps():
        A("s_getreg_b32 s59, hwreg(HW_REG_XCC_ID)")
        A("s_waitcnt lgkmcnt(0)")
        A("s_mul_i32 s41, s2, 6")
        A("s_add_u32 s41, s41, s3")
        A("s_lshl_b32 s41, s41, 6")
        A(f"s_add_u32 s41, s41, {STOFF}")
        A("s_mov_b64 exec, 1")
        A("v_mov_b32 v24, s41")
        for i in range(12):
            A(f"v_mov_b32 v25, s{60+2*i}")
            A(f"global_store_dword v24, v25, {WS} offset:{4*i}")
        A("v_mov_b32 v25, s59")
        A(f"global_store_dword v24, v25, {WS} offset:60")

    def vec_coords(iw):
        A("v_bfe_u32 v24, v0, 3, 2")
        A("v_bfe_u32 v25, v0, 2, 1")
        A("v_lshrrev_b32 v26, 5, v0")
        A(f"v_add_u32 v26, {iw}, v26")
        A("v_lshlrev_b32 v25, 10, v25")
        A("v_lshl_add_u32 v25, v24, 8, v25")
        A("v_lshl_add_u32 v25, v26, 6, v25")
        A("v_and_b32 v27, 3, v0")
        A("v_lshl_add_u32 v25, v27, 4, v25")
        A("v_and_b32 v27, 7, v0")
        A("v_lshlrev_b32 v27, 4, v27")
    def r1_addr(dst):
        A(f"v_lshl_add_u32 v{dst}, v26, 14, v27")
        A(f"v_lshl_add_u32 v{dst}, v24, 12, v{dst}")
        A(f"s_lshl_b32 s54, s{sB}, 3")
        A(f"s_add_u32 s54, s54, s{sSPL}")
        A(f"s_lshl_b32 s41, s{sHKV}, 16")
        A("s_lshl_b32 s45, s54, 7")
        A("s_add_u32 s41, s41, s45")
        A(f"s_add_u32 s41, s41, {R1OFF}")
        A(f"v_add_u32 v{dst}, s41, v{dst}")
    def r2_addr(dst):
        A(f"v_lshl_add_u32 v{dst}, v26, 15, v27")
        A(f"v_lshl_add_u32 v{dst}, v24, 13, v{dst}")
        A(f"s_lshl_b32 s41, s{sB}, 10")
        A("s_and_b32 s45, s2, 63")
        A("s_add_u32 s41, s41, s45")
        A("s_lshl_b32 s41, s41, 7")
        A(f"s_add_u32 s41, s41, {R2OFF}")
        A(f"v_add_u32 v{dst}, s41, v{dst}")

    C("workgroups past the 256 that carry work leave at once")
    A("s_cmp_ge_u32 s2, 256")
    A("s_cbranch_scc1 L_end")
    A("s_load_dwordx16 s[4:19], s[0:1], 0")
    stamp(0)
    A("v_lshrrev_b32 v1, 6, v0")
    A("v_and_b32 v0, 63, v0")
    A(f"s_lshr_b32 s{sPAIR}, s2, 3")
    A("v_readfirstlane_b32 s3, v1")
    A(f"s_and_b32 s{sSPL}, s2, 7")
    A(f"s_lshr_b32 s{sB}, s2, 6")
    A(f"s_and_b32 s{sHKV}, s{sPAIR}, 7")
    A("s_cmp_eq_u32 s3, 4")
    A("s_cbranch_scc1 L_loader")
    A("s_cmp_eq_u32 s3, 5")
    A("s_cbranch_scc1 L_claimer")

    A("v_lshrrev_b32 v7, 4, v0")
    A("v_and_b32 v21, 15, v0")
    A("v_and_b32 v22, 3, v0")
    A("v_bfe_u32 v23, v0, 2, 2")
    A("s_cmp_lg_u32 s3, 0")
    A("s_cbranch_scc1 L_noq")
    C("---- wave 0: partial q = x[:, 128b:128b+128] @ wq[128b:128b+128, 64 columns] for all four batches")
    A("s_mov_b32 s30, 0x400000"); A("s_mov_b32 s31, 0x20000")
    A(f"s_lshl_b32 s41, s{sB}, 20")
    A(f"s_lshl_b32 s42, s{sHKV}, 10")
    A("s_add_u32 s41, s41, s42")
    A(f"s_lshl_b32 s42, s{sSPL}, 7")
    A("s_add_u32 s41, s41, s42")
    A("v_lshrrev_b32 v24, 3, v0")
    A("v_lshlrev_b32 v24, 13, v24")
    A("v_and_b32 v25, 7, v0")
    A("v_lshl_add_u32 v24, v25, 4, v24")
    A("v_lshlrev_b32 v25, 10, v22")
    A("v_lshl_add_u32 v25, v7, 4, v25")
    A(f"s_lshl_b32 s42, s{sB}, 8")
    A("v_add_u32 v25, s42, v25")
    A(f"s_mov_b32 m0, {WST}")
    A("s_waitcnt lgkmcnt(0)")
    A(f"s_mov_b32 s28, s{sWQ}"); A(f"s_mov_b32 s29, s{sWQ+1}")
    for i in range(16):
        if i:
            A(f"s_mov_b32 m0, {WST + i*1024}")
            A(f"s_add_u32 s41, s41, {8*8192}")
        if not diag & 2: A(f"buffer_load_dwordx4 v24, s[28:31], s41 offen {wflags} lds")
        if i == 3:
            for u in range(4):
                A(f"global_load_dwordx4 v[{44+4*u}:{47+4*u}], v25, s[{sX}:{sX+1}] offset:{u*64}")
    A("s_branch L_st")
    lab("L_noq")
    A("s_cmp_lg_u32 s3, 1")
    A("s_cbranch_scc1 L_st")
    if dyn:
        C("---- wave 1 of the workgroup with split 0 clears its pair's work counter before its q part is published")
        A(f"s_cmp_lg_u32 s{sSPL}, 0")
        A("s_cbranch_scc1 L_st")
        A(f"s_lshl_b32 s42, s{sPAIR}, {cts}")
        A(f"s_add_u32 s42, s42, {CTOFF}")
        A("v_lshl_add_u32 v26, v0, 2, s42")
        A("v_mov_b32 v80, 0")
        A("s_waitcnt lgkmcnt(0)")
        A("s_mov_b32 exec_hi, 0")
        A(f"global_store_dword v26, v80, {WS} sc1")
        A("s_mov_b64 exec, -1")
    lab("L_st")
    A("s_waitcnt lgkmcnt(0)")
    A(f"s_load_dword s{sTAG}, {WS}, {EPO}")
    stamp(9)
    A("s_barrier")
    C("K fragment addresses: key*256 + ((t ^ (key>>2))*64) + ((g ^ (key&3))*16) + 4096*(wave's slice)")
    A(f"s_and_b32 s43, s3, {CW-1}")
    A("s_lshl_b32 s43, s43, 12")
    A("v_xor_b32 v24, v7, v22")
    A("v_lshlrev_b32 v24, 4, v24")
    A("v_lshl_add_u32 v24, v21, 8, v24")
    A("v_add_u32 v24, s43, v24")
    for t in range(4):
        A(f"v_xor_b32 v25, {t}, v23")
        A(f"v_lshl_add_u32 v{2+t}, v25, 6, v24")
    C("V fragment address: g*1024 + (l&15)*16 + 4096*(wave's slice)")
    A("v_lshlrev_b32 v6, 10, v7")
    A("v_lshl_add_u32 v6, v21, 4, v6")
    A("v_add_u32 v6, s43, v6")
    C("selector masks")
    A("v_mov_b32 v24, 0xffff")
    A("v_mov_b32 v25, 0xffff0000")
    A("v_mov_b32 v13, 0")
    A("v_mov_b32 v14, 0")
    A("v_cmp_eq_u32 vcc, 0, v22"); nop(2); A("v_cndmask_b32 v13, v13, v24, vcc")
    A("v_cmp_eq_u32 vcc, 1, v22"); nop(2); A("v_cndmask_b32 v13, v13, v25, vcc")
    A("v_cmp_eq_u32 vcc, 2, v22"); nop(2); A("v_cndmask_b32 v14, v14, v24, vcc")
    A("v_cmp_eq_u32 vcc, 3, v22"); nop(2); A("v_cndmask_b32 v14, v14, v25, vcc")
    A("v_mov_b32 v15, 0xff800000")
    A("v_mov_b32 v16, 0xff800000")
    A("v_mov_b32 v17, 0")
    A("v_mov_b32 v18, 1")
    A(f"v_mov_b32 v19, {FL}")
    for r in range(88, 96): A(f"v_mov_b32 v{r}, 0")
    A(f"s_mov_b32 s{sCS}, {f2u(cs):#x}")
    A("s_waitcnt lgkmcnt(0)")
    A(f"s_add_u32 s{sTAG}, s{sTAG}, 1")
    A(f"s_and_b32 s{sT8}, s{sTAG}, 0xff")
    A("s_cmp_eq_u32 s3, 0")
    A("s_cbranch_scc1 L_qprod")
    A("s_cmp_lg_u32 s3, 1")
    A("s_cbranch_scc1 L_qgather")
    A("s_waitcnt vmcnt(0)")
    A(f"ds_write_b32 v19, v18 offset:{PWF-FL}")
    A("s_branch L_qgather")
    lab("L_qprod")
    A("v_lshl_add_u32 v24, v7, 3, v23")
    A("v_lshlrev_b32 v24, 7, v24")
    A("v_lshl_add_u32 v24, v22, 3, v24")
    A(f"v_add_u32 v24, {WST}, v24")
    for t in range(4):
        A(f"s_waitcnt vmcnt({12 - 4*t})")
        for ct in range(4):
            r = 112 + 16*t + 4*ct
            A(f"ds_read_b64_tr_b16 v[{r}:{r+1}], v24 offset:{t*4096 + ct*32}")
            A(f"ds_read_b64_tr_b16 v[{r+2}:{r+3}], v24 offset:{t*4096 + ct*32 + 512}")
        if t:
            A("s_waitcnt lgkmcnt(8)")
            u = t - 1
            for ct in range(4):
                r = 112 + 16*u + 4*ct
                cin = "0" if u == 0 else f"v[{60+4*ct}:{63+4*ct}]"
                A(f"v_mfma_f32_16x16x32_bf16 v[{60+4*ct}:{63+4*ct}], v[{r}:{r+3}], v[{44+4*u}:{47+4*u}], {cin}")
    stamp(10)
    A("s_waitcnt lgkmcnt(0)")
    for ct in range(4):
        r = 112 + 48 + 4*ct
        A(f"v_mfma_f32_16x16x32_bf16 v[{60+4*ct}:{63+4*ct}], v[{r}:{r+3}], v[56:59], v[{60+4*ct}:{63+4*ct}]")
    A("v_lshlrev_b32 v25, 16, v22")
    A("v_lshl_add_u32 v25, v23, 6, v25")
    A("v_lshl_add_u32 v25, v7, 4, v25")
    A(f"s_lshl_b32 s41, s{sHKV}, 13")
    A(f"s_lshl_b32 s42, s{sB}, 11")
    A("s_add_u32 s41, s41, s42")
    A(f"s_lshl_b32 s42, s{sSPL}, 8")
    A("s_add_u32 s41, s41, s42")
    A(f"s_add_u32 s41, s41, {QOFF}")
    A("v_add_u32 v25, s41, v25")
    A("v_mov_b32 v27, 0xffffff00")
    for ct in range(1, 4):
        for r in range(4):
            A(f"v_mov_b32_dpp v{60+r}, v{60+4*ct+r} quad_perm:[0,1,2,3] row_mask:0xf bank_mask:{1<<ct:#x}")
    for r in range(4): A(f"v_and_or_b32 v{60+r}, v{60+r}, v27, s{sT8}")
    A(f"s_mov_b32 s44, {spin}")
    lab("L_pww")
    A(f"ds_read_b32 v20, v19 offset:{PWF-FL}")
    A("s_sub_u32 s44, s44, 1")
    A("s_cbranch_scc1 L_pww_x")
    A("s_waitcnt lgkmcnt(0)")
    A("v_readfirstlane_b32 s49, v20")
    A("s_cmp_lg_u32 s49, 0")
    A("s_cbranch_scc0 L_pww")
    lab("L_pww_x")
    if not diag & 4: A(f"global_store_dwordx4 v25, v[60:63], {WS} {stf}")
    stamp(1)
    lab("L_qgather")
    C("---- consumer wave w sums the four partials of head w's q, rounds to bf16 and shares it through LDS")
    A("v_and_b32 v25, 31, v0")
    A("v_lshlrev_b32 v24, 4, v25")
    A("v_lshrrev_b32 v26, 5, v0")
    A("v_lshl_add_u32 v24, v26, 12, v24")
    A(f"s_lshl_b32 s41, s{sPAIR}, 13")
    A("s_lshl_b32 s42, s3, 9")
    A("s_add_u32 s41, s41, s42")
    A(f"s_add_u32 s41, s41, {QOFF}")
    A("v_add_u32 v148, s41, v24")
    A("s_lshl_b32 s42, s3, 8")
    A(f"s_add_u32 s42, s42, {QB}")
    A("v_lshl_add_u32 v149, v25, 3, s42")
    C("---- addresses of the final phase")
    vOSC, vMLW, vH1O, vS2W, vS2R, vR2P, vH2A, vH2B, vOUT, vMSK, vWO = range(112, 123)
    A(f"s_lshl_b32 s{sHEAD}, s{sHKV}, 2")
    A(f"s_lshr_b32 s45, s{sSPL}, 1")
    A(f"s_add_u32 s{sHEAD}, s{sHEAD}, s45")
    A(f"s_and_b32 s{sHALF}, s{sSPL}, 1")
    A("v_lshlrev_b32 v20, 4, v0")
    A("s_lshl_b32 s43, s3, 11")
    A(f"v_add_u32 v{vS2W}, s43, v20")
    A(f"v_add_u32 v{vOSC}, {WST}, v{vS2W}")
    A("s_lshl_b32 s43, s3, 5")
    A(f"s_add_u32 s43, s43, {WST+8192}")
    A(f"v_lshl_add_u32 v{vMLW}, v23, 3, s43")
    A("s_and_b32 s43, s3, 1")
    A("s_lshl_b32 s43, s43, 1")
    vec_coords("s43")
    A(f"v_mov_b32 v{vS2R}, v25")
    r2_addr(vR2P)
    A("v_lshl_add_u32 v24, v23, 3, v22")
    A("v_lshlrev_b32 v24, 7, v24")
    A("v_lshl_add_u32 v24, v7, 4, v24")
    A(f"s_lshl_b32 s41, s{sHEAD}, 2")
    A(f"s_lshl_b32 s45, s{sHALF}, 1")
    A("s_add_u32 s41, s41, s45")
    A("s_lshr_b32 s45, s3, 1")
    A("s_add_u32 s41, s41, s45")
    A("s_lshl_b32 s46, s41, 5")
    A("s_lshl_b32 s41, s41, 12")
    A("s_and_b32 s45, s3, 1")
    A("s_lshl_b32 s43, s45, 2")
    A("s_add_u32 s46, s46, s43")
    A("s_lshl_b32 s45, s45, 6")
    A("s_add_u32 s41, s41, s45")
    A(f"s_add_u32 s41, s41, {R1OFF}")
    A(f"v_add_u32 v{vH1O}, s41, v24")
    A("s_lshl_b32 s46, s46, 10")
    A(f"s_lshl_b32 s45, s{sB}, 8")
    A("s_add_u32 s46, s46, s45")
    A(f"v_lshlrev_b32 v{vWO}, 10, v7")
    A(f"v_lshl_add_u32 v{vWO}, v21, 4, v{vWO}")
    A(f"v_add_u32 v{vWO}, s46, v{vWO}")
    A("v_lshrrev_b32 v24, 1, v0")
    A("v_lshlrev_b32 v24, 7, v24")
    A("v_and_b32 v25, 1, v0")
    A("v_lshl_add_u32 v24, v25, 4, v24")
    A("s_and_b32 s41, s2, 63")
    A("s_lshl_b32 s41, s41, 13")
    A(f"s_lshl_b32 s45, s{sB}, 5")
    A("s_add_u32 s41, s41, s45")
    A(f"s_add_u32 s41, s41, {R2OFF}")
    A(f"v_add_u32 v{vH2A}, s41, v24")
    A(f"v_add_u32 v{vH2B}, 0x1000, v{vH2A}")
    A("s_bfe_u32 s41, s2, 0x20002")
    A("s_lshl_b32 s41, s41, 10")
    A("s_bfe_u32 s45, s2, 0x20004")
    A("s_lshl_b32 s45, s45, 8")
    A("s_add_u32 s41, s41, s45")
    A("s_and_b32 s45, s2, 3")
    A("s_lshl_b32 s45, s45, 6")
    A("s_add_u32 s41, s41, s45")
    A(f"s_lshl_b32 s45, s{sB}, 2")
    A("s_add_u32 s41, s41, s45")
    A("v_and_b32 v24, 1, v7")
    A("v_lshlrev_b32 v24, 5, v24")
    A("v_lshrrev_b32 v25, 1, v7")
    A("v_lshl_add_u32 v24, v25, 4, v24")
    A(f"v_add_u32 v{vOUT}, s41, v24")
    A(f"v_mov_b32 v{vMSK}, 0xffffff00")
    A("s_mov_b32 s57, 0x0c04000c")
    A("s_mov_b32 s58, 0x04020100")
    A(f"s_mov_b32 s44, {spin}")
    def ready_wait(lbl, n):
        lab(lbl)
        A("ds_read_b32 v20, v19")
        A("s_sub_u32 s44, s44, 1")
        A(f"s_cbranch_scc1 {lbl}_x")
        A("s_waitcnt lgkmcnt(0)")
        A("v_readfirstlane_b32 s49, v20")
        A(f"s_cmp_ge_u32 s49, {n}")
        A(f"s_cbranch_scc0 {lbl}")
        lab(f"{lbl}_x")
    if qdelay: ready_wait("L_qdel", qdelay * 16 // UL)
    def poll(lbl, loads, tagged):
        lab(lbl)
        if stamps and lbl == stlbl:
            A("s_mov_b32 s78, s82")
            stamp(11)
            A("s_waitcnt lgkmcnt(0)")
        for ld in loads: A(ld)
        A("s_sub_u32 s44, s44, 1")
        A(f"s_cbranch_scc1 {lbl}_x")
        A("s_waitcnt vmcnt(0)")
        t = 68
        if len(tagged) == 8:
            a = tagged
            A(f"v_xor_b32 v{t}, s{sT8}, v{a[0]}")
            for j in range(1, 8): A(f"v_xor_b32 v{t+j}, s{sT8}, v{a[j]}")
            A(f"v_or3_b32 v{t}, v{t}, v{t+1}, v{t+2}")
            A(f"v_or3_b32 v{t+3}, v{t+3}, v{t+4}, v{t+5}")
            A(f"v_or3_b32 v{t}, v{t}, v{t+6}, v{t+7}")
            A(f"v_or_b32 v{t}, v{t}, v{t+3}")
        else:
            A(f"v_xor_b32 v{t}, s{sT8}, v{tagged[0]}")
            A(f"v_xor_b32 v{t+1}, s{sT8}, v{tagged[1]}")
            A(f"v_or_b32 v{t}, v{t}, v{t+1}")
        A(f"v_and_b32 v{t}, 0xff, v{t}")
        A(f"v_cmp_ne_u32 vcc, 0, v{t}")
        if len(tagged) == 8:
            A("s_and_b64 exec, exec, vcc")
        else:
            A("s_or_b32 s45, vcc_lo, vcc_hi")
            A("s_lshr_b32 s46, s45, 16")
            A("s_or_b32 s45, s45, s46")
            A("s_pack_ll_b32_b16 s46, s45, s45")
            A("s_mov_b32 s47, s46")
            A("s_and_b64 exec, exec, s[46:47]")
        if psleep:
            A(f"s_cbranch_scc0 {lbl}_x")
            A(f"s_sleep {psleep}")
            A(f"s_branch {lbl}")
        else:
            A(f"s_cbranch_scc1 {lbl}")
        lab(f"{lbl}_x")
        A("s_mov_b64 exec, -1")
        A("s_waitcnt vmcnt(0)")
    if not diag & 4: poll("L_qpoll", [f"global_load_dwordx4 v[44:47], v148, {WS} {ldf}",
                     f"global_load_dwordx4 v[48:51], v148, {WS} offset:2048 {ldf}"], list(range(44, 52)))
    for r in range(4): A(f"v_add_f32 v{44+r}, v{44+r}, v{48+r}")
    for r in range(4): A(f"v_mov_b32 v{48+r}, v{44+r}")
    for r in range(4): A(f"v_permlane32_swap_b32 v{44+r}, v{48+r}")
    for r in range(4): A(f"v_add_f32 v{44+r}, v{44+r}, v{48+r}")
    A("v_cvt_pk_bf16_f32 v44, v44, v45")
    A("v_cvt_pk_bf16_f32 v45, v46, v47")
    A("ds_write_b64 v149, v[44:45]")
    A("v_lshlrev_b32 v24, 8, v23")
    A("v_lshl_add_u32 v24, v7, 4, v24")
    A(f"v_add_u32 v24, {QB}, v24")
    A("s_mov_b64 exec, 1")
    A(f"ds_add_u32 v19, v18 offset:{QCNT-FL}")
    A("s_mov_b64 exec, -1")
    lab("L_qw")
    A(f"ds_read_b32 v20, v19 offset:{QCNT-FL}")
    A("s_sub_u32 s44, s44, 1")
    A("s_cbranch_scc1 L_qw_x")
    A("s_waitcnt lgkmcnt(0)")
    A("v_readfirstlane_b32 s49, v20")
    A("s_cmp_ge_u32 s49, 4")
    A("s_cbranch_scc0 L_qw")
    lab("L_qw_x")
    for t in range(4): A(f"ds_read_b128 v[{28+4*t}:{31+4*t}], v24 offset:{t*64}")
    stamp(2)
    def wo_loads():
        for tau in range(4):
            if diag & 1: break
            if tau: A(f"v_add_u32 v{vWO}, 0x2000, v{vWO}")
            A(f"global_load_dwordx4 v[{96+4*tau}:{99+4*tau}], v{vWO}, s[{sWO}:{sWO+1}] {wflags}")
    if not wodelay and not woend:
        C("---- prefetch this wave's 16 rows x 128 columns of wo")
        wo_loads()
    C("---- main loop; this wave takes 16 keys of each of its blocks")
    step = 2 * (4 // CW)
    if CW == 4:
        A("s_mov_b32 s47, 0")
        A("s_mov_b32 s48, 0")
    else:
        A("s_and_b32 s47, s3, 2")
        A(f"s_lshl_b32 s48, s47, {US}")
    A("s_mov_b32 s49, 0")
    A("s_mov_b32 s55, 0")
    lab("L_blk")
    for t in range(4): A(f"v_add_u32 v{8+t}, s48, v{2+t}")
    A(f"s_add_u32 s50, s48, {UNIT}")
    A("v_add_u32 v12, s50, v6")
    A("s_cmp_gt_u32 s49, s47")
    A("s_cbranch_scc1 L_kok")
    A(f"s_mov_b32 s44, {spin}")
    lab("L_kpoll")
    A("s_lshr_b32 s55, s55, 16")
    A("s_sub_u32 s55, s55, 1")
    A("s_cmp_ge_u32 s47, s55")
    A("s_cbranch_scc1 L_loopend")
    A("ds_read_b32 v20, v19")
    A("s_sub_u32 s44, s44, 1")
    A("s_cbranch_scc1 L_loopend")
    A("s_waitcnt lgkmcnt(0)")
    A("v_readfirstlane_b32 s55, v20")
    A("s_and_b32 s49, s55, 0xffff")
    A("s_cmp_gt_u32 s49, s47")
    A("s_cbranch_scc0 L_kpoll")
    lab("L_kok")
    for t in range(4): A(f"ds_read_b128 v[{44+4*t}:{47+4*t}], v{8+t}")
    A(f"s_lshr_b32 s51, s48, {US-2}")
    A("s_add_u32 s47, s47, 1")
    A("v_add_u32 v21, s51, v19")
    for t in range(4):
        A(f"s_waitcnt lgkmcnt({3-t})")
        cin = "0" if t == 0 else "v[76:79]"
        A(f"v_mfma_f32_16x16x32_bf16 v[76:79], v[{44+4*t}:{47+4*t}], v[{28+4*t}:{31+4*t}], {cin}")
    A("s_mov_b64 exec, 1")
    A("ds_add_u32 v21, v18 offset:4")
    A("s_mov_b64 exec, -1")
    A("s_cmp_gt_u32 s49, s47")
    A("s_cbranch_scc1 L_vok")
    nop(3)
    A("v_max3_f32 v20, v76, v77, v78")
    A("v_max_f32 v20, v20, v79")
    A("v_cmp_gt_f32 vcc, v20, v15")
    A("s_cbranch_vccz L_nomax1")
    A("s_mov_b32 s52, 1")
    A("s_branch L_newmax")
    lab("L_nomax1")
    def softmax():
        for r in range(4): A(f"v_fma_f32 v{76+r}, v{76+r}, s{sCS}, -v16")
        for r in range(4): A(f"v_exp_f32 v{76+r}, v{76+r}")
        nop(1)
        for r in range(4): A(f"v_cvt_pk_bf16_f32 v{24+r}, v{76+r}, v{76+r}")
        A("v_add_f32 v76, v76, v77")
        A("v_add_f32 v78, v78, v79")
        for r in range(4):
            A(f"v_and_b32 v{80+2*r}, v{24+r}, v13")
            A(f"v_and_b32 v{81+2*r}, v{24+r}, v14")
        A("v_add_f32 v76, v76, v78")
        A("v_add_f32 v17, v17, v76")
    softmax()
    A(f"s_mov_b32 s44, {spin}")
    lab("L_vpoll")
    A("ds_read_b32 v20, v19")
    A("s_sub_u32 s44, s44, 1")
    A("s_cbranch_scc1 L_vok1")
    A("s_waitcnt lgkmcnt(0)")
    A("v_readfirstlane_b32 s55, v20")
    A("s_and_b32 s49, s55, 0xffff")
    A("s_cmp_gt_u32 s49, s47")
    A("s_cbranch_scc0 L_vpoll")
    lab("L_vok1")
    for tau in range(4): A(f"ds_read_b128 v[{60+4*tau}:{63+4*tau}], v12 offset:{tau*256}")
    A("s_branch L_pv")
    lab("L_vok")
    for tau in range(4): A(f"ds_read_b128 v[{60+4*tau}:{63+4*tau}], v12 offset:{tau*256}")
    A("v_max3_f32 v20, v76, v77, v78")
    A("v_max_f32 v20, v20, v79")
    A("v_cmp_gt_f32 vcc, v20, v15")
    A("s_cbranch_vccz L_nomax2")
    A("s_mov_b32 s52, 0")
    lab("L_newmax")
    C("the running max rose for some head: take the true max over the 16 keys and rescale")
    A("v_mov_b32 v24, v20")
    nop(2)
    A("v_permlane16_swap_b32 v20, v24")
    nop(1)
    A("v_max_f32 v20, v20, v24")
    A("v_mov_b32 v24, v20")
    nop(2)
    A("v_permlane32_swap_b32 v20, v24")
    nop(1)
    A("v_max3_f32 v20, v20, v24, v15")
    A("v_sub_f32 v24, v15, v20")
    A(f"v_mul_f32 v24, s{sCS}, v24")
    A("v_exp_f32 v24, v24")
    A("v_mov_b32 v15, v20")
    A(f"v_mul_f32 v16, s{sCS}, v20")
    A("v_mul_f32 v17, v17, v24")
    for r in range(88, 96): A(f"v_mul_f32 v{r}, v{r}, v24")
    A("s_cmp_eq_u32 s52, 1")
    A("s_cbranch_scc1 L_nomax1")
    lab("L_nomax2")
    softmax()
    lab("L_pv")
    A(f"s_add_u32 s47, s47, {step-1}")
    A(f"s_add_u32 s48, s48, {step*UNIT}")
    A(f"s_and_b32 s48, s48, {RING-1}")
    for tau in range(4):
        A(f"s_waitcnt lgkmcnt({3-tau})")
        A(f"v_mfma_f32_16x16x16_bf16 v[88:91], v[{60+4*tau}:{61+4*tau}], v[{80+2*tau}:{81+2*tau}], v[88:91]")
        A(f"v_mfma_f32_16x16x16_bf16 v[92:95], v[{62+4*tau}:{63+4*tau}], v[{80+2*tau}:{81+2*tau}], v[92:95]")
    A("s_mov_b64 exec, 1")
    A("ds_add_u32 v21, v18 offset:8")
    A("s_mov_b64 exec, -1")
    if wodelay:
        A("s_lshr_b32 s50, s47, 2")
        A(f"s_cmp_lg_u32 s50, {wodelay * 16 // UL // 4}")
        A("s_cbranch_scc1 L_blk")
        if CW == 4:
            A("s_bitcmp1_b32 s47, 1")
            A("s_cbranch_scc1 L_blk")
        C("---- prefetch this wave's 16 rows x 128 columns of wo")
        wo_loads()
    A("s_branch L_blk")
    lab("L_loopend")
    if sync_at:
        A(f"s_add_u32 s90, s60, {sync_at + 1023}")
        A("s_and_b32 s90, s90, 0xfffffc00")
        lab("L_sync")
        A("s_memrealtime s[92:93]")
        A("s_waitcnt lgkmcnt(0)")
        A("s_sub_u32 s92, s92, s90")
        A("s_cmp_lt_i32 s92, 0")
        A("s_cbranch_scc1 L_sync")
    stamp(3)
    if woend == 1:
        C("---- this wave's 16 rows x 128 columns of wo travel while the partial results are exchanged")
        wo_loads()
    C("---- hand the four waves' partial results to the publishing waves through LDS")
    A("v_mov_b32 v24, v17")
    A(f"ds_write_b128 v{vOSC}, v[88:91]")
    A(f"s_mov_b32 s44, {spin}")
    A("v_permlane16_swap_b32 v17, v24")
    A(f"ds_write_b128 v{vOSC}, v[92:95] offset:1024")
    A("v_add_f32 v17, v17, v24")
    A("v_mov_b32 v24, v17")
    nop(2)
    A("v_permlane32_swap_b32 v17, v24")
    nop(1)
    A("v_add_f32 v17, v17, v24")
    A(f"ds_write_b64 v{vMLW}, v[16:17]")
    if woend == 2:
        wo_loads()
    A("s_waitcnt lgkmcnt(0)")
    A("s_barrier")
    if woend == 3:
        wo_loads()
    stamp(4)
    C("---- hand-off 1: gather the 8 splits x 4 batches of this wave's 16 rows of one head")
    if h1ack: A("s_barrier")
    if pdelay: A(f"s_sleep {pdelay}")
    poll("L_h1poll", [f"global_load_dwordx4 v[52:55], v{vH1O}, {WS} {ldf}",
                      f"global_load_dwordx4 v[56:59], v{vH1O}, {WS} offset:512 {ldf}"], [55, 59])
    stamp(5)
    if stamps: A(f"s_sub_u32 s80, {spin}, s44")
    A("v_max_f32 v20, v55, v59")
    A("v_perm_b32 v44, v53, v52, s57")
    A("v_perm_b32 v45, v57, v56, s57")
    A("v_max_f32_dpp v20, v20, v20 quad_perm:[1,0,3,2] row_mask:0xf bank_mask:0xf")
    A("v_perm_b32 v44, v54, v44, s58")
    A("v_perm_b32 v45, v58, v45, s58")
    A("v_max_f32_dpp v20, v20, v20 quad_perm:[2,3,0,1] row_mask:0xf bank_mask:0xf")
    A("v_sub_f32 v46, v55, v20")
    A("v_sub_f32 v47, v59, v20")
    A("v_exp_f32 v46, v46")
    A("v_exp_f32 v47, v47")
    A(f"s_mov_b32 s44, {spin}")
    A("v_mul_f32 v60, v52, v46")
    A("v_add_f32 v20, v46, v47")
    A("v_mul_f32 v61, v53, v46")
    A("v_mul_f32 v62, v54, v46")
    A("v_mul_f32 v63, v44, v46")
    A("v_add_f32_dpp v20, v20, v20 quad_perm:[1,0,3,2] row_mask:0xf bank_mask:0xf")
    A("v_fmac_f32 v60, v56, v47")
    A("v_fmac_f32 v61, v57, v47")
    A("v_add_f32_dpp v20, v20, v20 quad_perm:[2,3,0,1] row_mask:0xf bank_mask:0xf")
    A("v_fmac_f32 v62, v58, v47")
    A("v_fmac_f32 v63, v45, v47")
    A("v_rcp_f32 v20, v20")
    for r in range(4): A(f"v_add_f32_dpp v{60+r}, v{60+r}, v{60+r} quad_perm:[1,0,3,2] row_mask:0xf bank_mask:0xf")
    for r in range(4): A(f"v_add_f32_dpp v{60+r}, v{60+r}, v{60+r} quad_perm:[2,3,0,1] row_mask:0xf bank_mask:0xf")
    for r in range(4): A(f"v_mul_f32 v{60+r}, v{60+r}, v20")
    for r in range(4): A(f"v_cvt_pk_bf16_f32 v{60+r}, v{60+r}, v{60+r}")
    for r in range(4):
        A(f"v_and_b32 v{80+2*r}, v{60+r}, v13")
        A(f"v_and_b32 v{81+2*r}, v{60+r}, v14")
        if r:
            tau = r - 1
            c0 = "0" if tau == 0 else "v[88:91]"
            c1 = "0" if tau == 0 else "v[92:95]"
            A(f"v_mfma_f32_16x16x16_bf16 v[88:91], v[{96+4*tau}:{97+4*tau}], v[{80+2*tau}:{81+2*tau}], {c0}")
            A(f"v_mfma_f32_16x16x16_bf16 v[92:95], v[{98+4*tau}:{99+4*tau}], v[{80+2*tau}:{81+2*tau}], {c1}")
    A("v_mfma_f32_16x16x16_bf16 v[88:91], v[108:109], v[86:87], v[88:91]")
    A("v_mfma_f32_16x16x16_bf16 v[92:95], v[110:111], v[86:87], v[92:95]")
    C("second scratch area: the start of the ring is free by now")
    A("s_cmp_ge_u32 s3, 2")
    nop(6)
    A(f"ds_write_b128 v{vS2W}, v[88:91]")
    A(f"ds_write_b128 v{vS2W}, v[92:95] offset:1024")
    A("s_waitcnt lgkmcnt(0)")
    A("s_barrier")
    A("s_cbranch_scc1 L_h2")
    for w in range(4): A(f"ds_read_b128 v[{60+4*w}:{63+4*w}], v{vS2R} offset:{w*2048}")
    A("s_waitcnt lgkmcnt(2)")
    A("v_pk_add_f32 v[60:61], v[60:61], v[64:65]")
    A("v_pk_add_f32 v[62:63], v[62:63], v[66:67]")
    A("s_waitcnt lgkmcnt(0)")
    A("v_pk_add_f32 v[68:69], v[68:69], v[72:73]")
    A("v_pk_add_f32 v[70:71], v[70:71], v[74:75]")
    A("v_pk_add_f32 v[60:61], v[60:61], v[68:69]")
    A("v_pk_add_f32 v[62:63], v[62:63], v[70:71]")
    for r in range(4): A(f"v_and_or_b32 v{60+r}, v{60+r}, v{vMSK}, s{sT8}")
    A(f"global_store_dwordx4 v{vR2P}, v[60:63], {WS} {stf}")
    stamp(6)
    if h2ack:
        if h2ack == 1: A("s_waitcnt vmcnt(0)")
        A("s_barrier")
    A("s_branch L_fin")
    lab("L_h2")
    A("s_cmp_eq_u32 s3, 3")
    A("s_cbranch_scc1 L_fin")
    if h2ack: A("s_barrier")
    if pdelay2: A(f"s_sleep {pdelay2}")
    stamp(6)
    C("---- hand-off 2: sum 64 row-slices for 8 outputs of one batch")
    poll("L_h2poll", [f"global_load_dwordx4 v[52:55], v{vH2A}, {WS} {ldf}",
                      f"global_load_dwordx4 v[56:59], v{vH2B}, {WS} {ldf}"], list(range(52, 60)))
    stamp(7)
    if stamps and stlbl == 'L_h2poll': A(f"s_sub_u32 s80, {spin}, s44")
    A("v_pk_add_f32 v[52:53], v[52:53], v[56:57]")
    A("v_pk_add_f32 v[54:55], v[54:55], v[58:59]")
    nop(1)
    A("v_permlane32_swap_b32 v52, v53")
    A("v_permlane32_swap_b32 v54, v55")
    nop(1)
    A("v_add_f32 v52, v52, v53")
    A("v_add_f32 v54, v54, v55")
    nop(2)
    A("v_permlane16_swap_b32 v52, v54")
    nop(1)
    A("v_add_f32 v52, v52, v54")
    for dpp in ("quad_perm:[2,3,0,1]", "row_ror:4", "row_ror:8"):
        nop(2)
        A(f"v_add_f32_dpp v52, v52, v52 {dpp} row_mask:0xf bank_mask:0xf")
    A("s_mov_b32 s46, 0x00010001")
    A("s_mov_b32 s47, 0x00010001")
    A("v_mov_b32_dpp v53, v52 quad_perm:[1,0,3,2] row_mask:0xf bank_mask:0xf")
    A("s_mov_b64 exec, s[46:47]")
    A("v_cvt_pk_bf16_f32 v52, v52, v53")
    A(f"global_store_dword v{vOUT}, v52, s[{sOUT}:{sOUT+1}] {outf}")
    A("s_cmp_lg_u32 s2, 0")
    A("s_cbranch_scc1 L_fin")
    C("every workgroup has published tagged data by now: advance the hand-off epoch")
    A("s_mov_b64 exec, 1")
    A(f"v_mov_b32 v25, s{sTAG}")
    A("v_mov_b32 v24, 0")
    A(f"global_store_dword v24, v25, {WS} offset:{EPO}")
    lab("L_fin")
    if stamps:
        A("s_waitcnt vmcnt(0)")
        stamp(8)
        if probe is not None:
            A("s_waitcnt lgkmcnt(0)")
            pw, pi, pT = probe
            A(f"s_cmp_lg_u32 s3, {pw}")
            A("s_cbranch_scc1 L_end")
            A(f"s_add_u32 s90, s{60+2*pi}, {pT}")
            lab("L_probe")
            A("s_memrealtime s[92:93]")
            A("s_waitcnt lgkmcnt(0)")
            A("s_sub_u32 s92, s92, s90")
            A("s_cmp_lt_i32 s92, 0")
            A("s_cbranch_scc1 L_probe")
            A("s_endpgm")
        dump_stamps()
    A("s_endpgm")

    lab("L_loader")
    if prio: A(f"s_setprio {prio}")
    A("v_lshrrev_b32 v7, 4, v0")
    A("v_and_b32 v8, 15, v0")
    for i in range(4):
        A(f"v_add_u32 v9, {4*i}, v7")
        A("v_xor_b32 v9, v9, v8")
        A("v_lshlrev_b32 v9, 4, v9")
        A(f"v_lshl_add_u32 v{2+i}, v7, 8, v9")
    A("v_lshlrev_b32 v6, 4, v0")
    A(f"v_mov_b32 v10, {FL}")
    A(f"s_lshl_b32 s40, s{sPAIR}, 22")
    A("s_mov_b32 s41, 0")
    A("s_mov_b32 s42, 0")
    A(f"s_mov_b32 s43, {0 if peel else -((UL - 1 + depth) // UL)}")
    A("v_mov_b32 v9, 0")
    A("v_mov_b32 v12, 0")
    A("s_mov_b32 s51, 0")
    A(f"v_mov_b32 v13, {FL}")
    A("s_mov_b32 s22, 0x8000000"); A("s_mov_b32 s23, 0x20000")
    A("s_mov_b32 s26, 0x8000000"); A("s_mov_b32 s27, 0x20000")
    def addr(static=True):
        if static:
            A("s_lshl_b32 s46, s41, 3")
            A(f"s_add_u32 s46, s46, s{sSPL}")
        A(f"s_lshr_b32 s47, s46, {G.bit_length()-1}")
        A(f"s_and_b32 s48, s46, {G-1}")
        if rrot:
            A(f"s_mul_i32 s49, s{sPAIR}, {rrot}")
            A("s_add_u32 s47, s47, s49")
            A(f"s_and_b32 s47, s47, {R-1}")
        if grot:
            A(f"s_mul_i32 s49, s{sPAIR}, {grot}")
            A("s_add_u32 s48, s48, s49")
            A(f"s_and_b32 s48, s48, {G-1}")
        A(f"s_mul_i32 s47, s47, {span}")
        A(f"s_mul_i32 s48, s48, {piece*1024}")
        A("s_add_u32 s44, s47, s48")
        A("s_add_u32 s44, s44, s40")
    grp = min(piece, 4)
    pubpos = (UL - 1 + depth) % UL
    publag = (UL - 1 + depth) // UL
    rapos = UL - 5
    assert cah >= publag
    uid = [0]
    def unit(which, u_static=None):
        srd = "s[20:23]" if which == 0 else "s[24:27]"
        k = uid[0]; uid[0] += 1
        if u_static is None or u_static >= ring:
            if which == 1: A("s_waitcnt lgkmcnt(0)")
            A("v_readfirstlane_b32 s50, v12")
            A("s_cmp_ge_u32 s50, s51")
            A(f"s_cbranch_scc1 L_free{k}")
            A(f"s_mov_b32 s52, {spin}")
            lab(f"L_wfree{k}")
            A("ds_read_b32 v12, v13 offset:4")
            A("s_sub_u32 s52, s52, 1")
            A(f"s_cbranch_scc1 L_free{k}")
            A("s_waitcnt lgkmcnt(0)")
            A("v_readfirstlane_b32 s50, v12")
            A("s_cmp_ge_u32 s50, s51")
            A(f"s_cbranch_scc0 L_wfree{k}")
            lab(f"L_free{k}")
        for i in range(UL):
            pi, kk = divmod(i, piece)
            if i % grp == 0:
                A(f"s_add_u32 s45, s44, {pi*pstride + kk*1024}")
                A(f"s_add_u32 m0, s42, {i*1024}")
            g_idx = None if u_static is None else u_static * UL + i
            if g_idx is None or g_idx >= depth:
                A(f"s_waitcnt vmcnt({depth-1})")
            elif i % grp == 0:
                nop(1)
            if g_idx is not None:
                marks = {depth: 1, depth + 15: 2, depth + 31: 3, depth + 63: 4, depth + 95: 5, 127: 6}
                if g_idx in marks: stamp(marks[g_idx])
            va = f"v{2+(i&3)}" if which == 0 else "v6"
            off = (i % grp) * 1024
            A(f"buffer_load_dwordx4 {va}, {srd}, s45 offen offset:{off} {flags} lds")
            if i == pubpos and (u_static is None or u_static >= publag):
                A("s_add_u32 s43, s43, 1")
                A("v_max_i32 v11, s43, v9" if not peel else "v_mov_b32 v11, s43")
                A("ds_write_b32 v10, v11")
            if i == rapos and (u_static is None or u_static + 1 >= ring):
                A(f"s_add_u32 s50, s42, {UNIT}")
                A(f"s_and_b32 s50, s50, {RING-1}")
                A(f"s_lshr_b32 s50, s50, {US-2}")
                A("v_add_u32 v13, s50, v10")
                A("s_lshl_b32 s51, s41, 1")
                A(f"s_add_u32 s51, s51, {which+1}")
                A(f"s_lshr_b32 s51, s51, {ring.bit_length()-1}")
                A(f"s_lshl_b32 s51, s51, {CW.bit_length()-1}")
                A("ds_read_b32 v12, v13 offset:4")
                if which == 1:
                    A("s_lshl_b32 s50, s41, 2")
                    A("v_add_u32 v16, s50, v10")
                    A(f"ds_read_b32 v17, v16 offset:{MBOX-FL+4}")
            if u_static is not None and g_idx == bar_at - 1:
                A("s_barrier")
        A(f"s_add_u32 s42, s42, {UNIT}")
        A(f"s_and_b32 s42, s42, {RING-1}")
    npeel = ring // 2
    assert bar_at <= depth
    addr()
    A("s_waitcnt lgkmcnt(0)")
    A(f"s_mov_b32 s20, s{sK}"); A(f"s_mov_b32 s21, s{sK+1}")
    A(f"s_mov_b32 s24, s{sV}"); A(f"s_mov_b32 s25, s{sV+1}")
    A(f"s_load_dword s{sTAG}, {WS}, {EPO}")
    if bar_at == 0: A("s_barrier")
    if peel:
        for n in range(npeel):
            if n: addr()
            unit(0, 2*n)
            unit(1, 2*n+1)
            A("s_add_u32 s41, s41, 1")
    else:
        assert bar_at == 0
        A("s_branch L_first")
    lab("L_ld")
    if stamps:
        for bi, si in ((1, 1), (2, 2), (3, 3), (4, 4)):
            if peel: break
            A(f"s_cmp_lg_u32 s41, {bi*16//UL}")
            A(f"s_cbranch_scc1 L_nosta{si}")
            stamp(si)
            lab(f"L_nosta{si}")
        A(f"s_cmp_lg_u32 s41, {5*16//UL}")
        A("s_cbranch_scc1 L_nost7")
        stamp(7)
        lab("L_nost7")
        A(f"s_cmp_lg_u32 s41, {NBW//2}")
        A("s_cbranch_scc1 L_nost9")
        stamp(9)
        lab("L_nost9")
    A("s_waitcnt lgkmcnt(0)")
    A("v_readfirstlane_b32 s46, v17")
    A("s_cmp_lg_u32 s46, 0")
    A("s_cbranch_scc1 L_got")
    A(f"s_mov_b32 s52, {spin}")
    lab("L_wmb")
    A(f"ds_read_b32 v17, v16 offset:{MBOX-FL+4}")
    A("s_sub_u32 s52, s52, 1")
    A("s_cbranch_scc1 L_drain")
    A("s_waitcnt lgkmcnt(0)")
    A("v_readfirstlane_b32 s46, v17")
    A("s_cmp_lg_u32 s46, 0")
    A("s_cbranch_scc0 L_wmb")
    lab("L_got")
    A(f"s_cmp_gt_u32 s46, {NB}")
    A("s_cbranch_scc1 L_drain")
    A("s_sub_u32 s46, s46, 1")
    addr(False)
    lab("L_first")
    unit(0)
    unit(1)
    A("s_add_u32 s41, s41, 1")
    A("s_branch L_ld")
    lab("L_drain")
    C("units not yet published; the upper half of the word announces the total (+1)")
    if stamps: A("s_mov_b32 s80, s41")
    A("s_lshl_b32 s50, s41, 17")
    A("s_add_u32 s43, s43, s50")
    A("s_add_u32 s43, s43, 0x10000")
    A("s_mov_b32 s48, 0")
    vec_coords("s48")
    r1_addr(28)
    for j in range(publag - 1, -1, -1):
        A(f"s_waitcnt vmcnt({UL*j})")
        A("s_add_u32 s43, s43, 1")
        A("v_mov_b32 v11, s43")
        A("ds_write_b32 v10, v11")
    stamp(8)
    lab("L_publish")
    C("---- waves 4 and 5 merge the four partial results and publish them (normalised rows + log-sum-exp)")
    if t2:
        r2_addr(34)
        A("v_mov_b32 v36, 0"); A("v_mov_b32 v37, 1"); A("v_mov_b32 v38, 1"); A("v_mov_b32 v39, 0")
        if t2 == 3:
            A("s_mov_b32 exec_lo, 0x01010101")
            A("s_mov_b32 exec_hi, 0x01010101")
            A(f"global_load_dword v35, v34, {WS}")
            A("s_mov_b64 exec, -1")
    A(f"v_add_u32 v25, {WST}, v25")
    A("v_lshlrev_b32 v27, 3, v26")
    A(f"v_add_u32 v27, {WST+8192}, v27")
    A("v_mov_b32 v29, 0xffffff00")
    A("s_mov_b32 s56, 0x07060501")
    A("s_mov_b32 s57, 0x07060502")
    A("s_mov_b32 s58, 0x07060503")
    A("s_waitcnt lgkmcnt(0)")
    A(f"s_add_u32 s{sTAG}, s{sTAG}, 1")
    A(f"s_and_b32 s{sT8}, s{sTAG}, 0xff")
    A("s_barrier")
    for w in range(4): A(f"ds_read_b64 v[{44+2*w}:{45+2*w}], v27 offset:{w*32}")
    for w in range(4): A(f"ds_read_b128 v[{60+4*w}:{63+4*w}], v25 offset:{w*2048}")
    A("s_waitcnt lgkmcnt(4)")
    A("v_max3_f32 v30, v44, v46, v48")
    A("v_max_f32 v30, v30, v50")
    for w in range(4): A(f"v_sub_f32 v{52+2*w}, v{44+2*w}, v30")
    for w in range(4): A(f"v_exp_f32 v{52+2*w}, v{52+2*w}")
    A("s_waitcnt lgkmcnt(0)")
    A("v_mul_f32 v31, v45, v52")
    A("v_pk_mul_f32 v[76:77], v[60:61], v[52:53] op_sel_hi:[1,0]")
    A("v_fmac_f32 v31, v47, v54")
    A("v_pk_mul_f32 v[78:79], v[62:63], v[52:53] op_sel_hi:[1,0]")
    A("v_fmac_f32 v31, v49, v56")
    A("v_pk_fma_f32 v[76:77], v[64:65], v[54:55], v[76:77] op_sel_hi:[1,0,1]")
    A("v_fmac_f32 v31, v51, v58")
    A("v_pk_fma_f32 v[78:79], v[66:67], v[54:55], v[78:79] op_sel_hi:[1,0,1]")
    A("v_rcp_f32 v32, v31")
    A("v_log_f32 v31, v31")
    A("v_pk_fma_f32 v[76:77], v[68:69], v[56:57], v[76:77] op_sel_hi:[1,0,1]")
    A("v_pk_fma_f32 v[78:79], v[70:71], v[56:57], v[78:79] op_sel_hi:[1,0,1]")
    A("v_pk_fma_f32 v[76:77], v[72:73], v[58:59], v[76:77] op_sel_hi:[1,0,1]")
    A("v_pk_fma_f32 v[78:79], v[74:75], v[58:59], v[78:79] op_sel_hi:[1,0,1]")
    A("v_add_f32 v30, v30, v31")
    A("v_pk_mul_f32 v[78:79], v[78:79], v[32:33] op_sel_hi:[1,0]")
    A("v_pk_mul_f32 v[76:77], v[76:77], v[32:33] op_sel_hi:[1,0]")
    A(f"v_and_or_b32 v83, v30, v29, s{sT8}")
    A("v_perm_b32 v82, v78, v79, s58")
    A("v_perm_b32 v80, v76, v79, s56")
    A("v_perm_b32 v81, v77, v79, s57")
    A(f"global_store_dwordx4 v28, v[80:83], {WS} {stf}")
    stamp(11)
    if t2 == 1:
        A(f"global_store_dwordx4 v34, v[36:39], {WS} {stf}")
    if t2 == 2:
        A("s_mov_b32 exec_lo, 0x01010101")
        A("s_mov_b32 exec_hi, 0x01010101")
        A(f"global_load_dword v35, v34, {WS}")
        A("s_mov_b64 exec, -1")
    if h1ack:
        if h1ack == 1: A(f"s_waitcnt vmcnt({1 if t2 in (1, 2) else 0})")
        A("s_barrier")
    if stamps: dump_stamps()
    A("s_waitcnt vmcnt(0)")
    A("s_endpgm")

    lab("L_claimer")
    SS = S if dyn else NBW + 1
    C("clear the LDS flags; block list: the first steps are fixed, later ones are claimed")
    A("v_lshlrev_b32 v10, 3, v0")
    A(f"v_add_u32 v10, {FL}, v10")
    A("v_mov_b32 v14, 0")
    A("v_mov_b32 v15, 0")
    A("ds_write_b64 v10, v[14:15]")
    for j in range(4):
        A(f"v_lshl_add_u32 v9, v0, 2, {j}")
        A(f"v_lshl_add_u32 v{16+j}, v9, 3, s{sSPL}")
        A(f"v_add_u32 v{16+j}, 1, v{16+j}")
        A(f"v_cmp_gt_u32 vcc, {SS}, v9")
        nop(2)
        A(f"v_cndmask_b32 v{16+j}, v14, v{16+j}, vcc")
    A("v_lshlrev_b32 v10, 4, v0")
    A(f"v_add_u32 v10, {MBOX}, v10")
    A("ds_write_b128 v10, v[16:19]")
    A("s_waitcnt lgkmcnt(0)")
    A("s_barrier")
    A(f"s_load_dword s{sTAG}, {WS}, {EPO}")
    A("s_mov_b32 s48, 2")
    vec_coords("s48")
    r1_addr(28)
    if pw1 or pw2:
        C("bring this workgroup's hand-off lines on chip ahead of time (written with the previous tag), staggered")
        r2_addr(34)
        A("v_subrev_u32 v35, 0x8000, v28")
        A("v_subrev_u32 v36, 0x10000, v34")
        A(f"v_mov_b32 v4, {FL}")
        A(f"s_and_b32 s43, s{sPAIR}, 15")
        A(f"s_mul_i32 s43, s43, {pwat * 16 // UL}")
        A(f"s_add_u32 s43, s43, {10 * 16 // UL}")
        A(f"s_mov_b32 s44, {spin}")
        lab("L_pwd")
        A("ds_read_b32 v6, v4")
        A("s_sub_u32 s44, s44, 1")
        A("s_cbranch_scc1 L_pwd_x")
        A("s_waitcnt lgkmcnt(0)")
        A("v_readfirstlane_b32 s45, v6")
        A("s_cmp_ge_u32 s45, s43")
        A("s_cbranch_scc0 L_pwd")
        lab("L_pwd_x")
        A("s_waitcnt lgkmcnt(0)")
        for r in range(4): A(f"v_mov_b32 v{40+r}, s{sTAG}")
        if prd:
            A("s_mov_b32 exec_lo, 0x01010101")
            A("s_mov_b32 exec_hi, 0x01010101")
            if pw1:
                A(f"global_load_dword v40, v28, {WS}")
                A(f"global_load_dword v41, v35, {WS}")
            if pw2:
                A(f"global_load_dword v42, v34, {WS}")
                A(f"global_load_dword v43, v36, {WS}")
            A("s_mov_b64 exec, -1")
        else:
          if pw1:
            A(f"global_store_dwordx4 v28, v[40:43], {WS} {stf}")
            A(f"global_store_dwordx4 v35, v[40:43], {WS} {stf}")
          if pw2:
            A(f"global_store_dwordx4 v34, v[40:43], {WS} {stf}")
            A(f"global_store_dwordx4 v36, v[40:43], {WS} {stf}")
        A("s_waitcnt vmcnt(0)")
    if dyn:
        A(f"s_lshl_b32 s42, s{sPAIR}, {cts}")
        A(f"s_add_u32 s42, s42, {CTOFF}")
        A("v_mov_b32 v2, s42")
        A(f"s_add_u32 s28, s{sWS}, s42")
        A(f"s_addc_u32 s29, s{sWS+1}, 0")
        A("v_mov_b32 v3, 1")
        A("s_mov_b64 s[30:31], 0")
        A(f"s_lshl_b32 s38, s{sSPL}, 3")
        A("s_sub_u32 s39, 64, s38")
        A(f"v_mov_b32 v4, {FL}")
        A(f"v_mov_b32 v5, {MBOX + 4*S}")
        A(f"s_mov_b32 s43, {2*S - cah}")
        A("s_mov_b64 exec, 1")
        A(f"s_mov_b32 s44, {spin}")
        lab("L_cl")
        A("ds_read_b32 v6, v4")
        A("s_sub_u32 s44, s44, 1")
        A("s_cbranch_scc1 L_cl_x")
        A("s_waitcnt lgkmcnt(0)")
        A("v_readfirstlane_b32 s45, v6")
        A("s_and_b32 s45, s45, 0xffff")
        A("s_cmp_ge_u32 s45, s43")
        A("s_cbranch_scc0 L_cl")
        if satom == 2:
            LIM = NBW - S
            C("eight 8-bit counters in one word, one per column of blocks: take from the own column first, then from the fullest")
            lab("L_pick")
            A("s_lshr_b64 s[46:47], s[30:31], s38")
            A("s_lshl_b64 s[48:49], s[30:31], s39")
            A("s_cmp_eq_u32 s38, 0")
            A("s_cselect_b64 s[48:49], 0, s[48:49]")
            A("s_or_b64 s[46:47], s[46:47], s[48:49]")
            A("s_and_b32 s45, s46, 0xff")
            A("s_mov_b32 s50, 0")
            A(f"s_cmp_lt_u32 s45, {LIM}")
            A("s_cbranch_scc1 L_take")
            A(f"s_mov_b32 s50, {LIM << 3}")
            for j in range(1, 8):
                A(f"s_bfe_u32 s45, s{46 + j // 4}, {0x80000 + 8 * (j % 4):#x}")
                A(f"s_lshl3_add_u32 s45, s45, {j}")
                A("s_min_u32 s50, s50, s45")
            A(f"s_mov_b32 s45, {NB + 1}")
            A(f"s_cmp_ge_u32 s50, {LIM << 3}")
            A("s_cbranch_scc1 L_post")
            lab("L_take")
            A(f"s_add_u32 s50, s50, s{sSPL}")
            A("s_and_b32 s50, s50, 7")
            A("s_lshl_b32 s51, s50, 3")
            A("s_lshl_b64 s[46:47], 1, s51")
            A("s_mov_b64 s[30:31], s[46:47]")
            A("s_atomic_add_x2 s[46:47], s[28:29], 0x0 glc")
            A("s_waitcnt lgkmcnt(0)")
            A("s_add_u32 s30, s30, s46")
            A("s_addc_u32 s31, s31, s47")
            A("s_lshr_b64 s[46:47], s[46:47], s51")
            A("s_and_b32 s45, s46, 0xff")
            A(f"s_cmp_ge_u32 s45, {LIM}")
            A("s_cbranch_scc1 L_pick")
            A("s_lshl3_add_u32 s45, s45, s50")
            A(f"s_add_u32 s45, s45, {8*S + 1}")
            lab("L_post")
            A("s_add_u32 s43, s43, 2")
            A("v_mov_b32 v7, s45")
            A("ds_write_b32 v5, v7")
            A("v_add_u32 v5, 4, v5")
        elif satom:
            A("s_mov_b32 s45, 1")
            A("s_atomic_add s45, s[28:29], 0x0 glc")
            A("s_add_u32 s43, s43, 2")
            A("s_waitcnt lgkmcnt(0)")
            A(f"s_add_u32 s45, s45, {8*S + 1}")
            A("v_mov_b32 v7, s45")
            A("ds_write_b32 v5, v7")
            A("v_add_u32 v5, 4, v5")
        else:
            A(f"global_atomic_add v7, v2, v3, {WS} sc0 sc1")
            A("s_add_u32 s43, s43, 2")
            A("s_waitcnt vmcnt(0)")
            A(f"v_add_u32 v7, {8*S + 1}, v7")
            A("ds_write_b32 v5, v7")
            A("v_readfirstlane_b32 s45, v7")
            A("v_add_u32 v5, 4, v5")
        A(f"s_cmp_gt_u32 s45, {NB}")
        A("s_cbranch_scc0 L_cl")
        lab("L_cl_x")
        A("s_mov_b64 exec, -1")
    A("s_branch L_publish")
    lab("L_end")
    A("s_endpgm")

    src = HEAD + f"; @launch grid=(256,1,1) block=(384,1,1) lds={LDS}\n"
    src += f""".amdgcn_target "amdgcn-amd-amdhsa--gfx950"
.text
.globl {KN}
.p2align 8
.type {KN},@function
{KN}:
""" + "\n".join(L) + f"""
.section .rodata,"a"
.p2align 6
.amdhsa_kernel {KN}
  .amdhsa_next_free_vgpr 176
  .amdhsa_next_free_sgpr 96
  .amdhsa_accum_offset 176
  .amdhsa_group_segment_fixed_size 0
  .amdhsa_kernarg_size 64
  .amdhsa_user_sgpr_count 2
  .amdhsa_user_sgpr_kernarg_segment_ptr 1
  .amdhsa_system_sgpr_workgroup_id_x 1
  .amdhsa_float_denorm_mode_32 3
.end_amdhsa_kernel
"""
    return src

if __name__ == "__main__":
    kw = eval("dict(" + (sys.argv[2] if len(sys.argv) > 2 else "") + ")")
    open(sys.argv[1], "w").write(gen(**kw))
```

```python
import math, sys, struct

KN = "standalone__gqa_block_cached__decode_kernel"
HEAD = """; Kernarg layout for this problem (64 bytes, ptrs only, base s[0:1]):
"""

def f2u(x):
    return struct.unpack("<I", struct.pack("<f", x))[0]

def gen(depth=24, UL=8, piece=4, pstride=32768, rrot=4, grot=1, flags="nt", wflags="nt",
        stamps=False, spin=1 << 17, prio=3, probe=None, psleep=0, qdelay=3, S=56, cah=6, bar_at=0,
        pw2=0, outf='', sync_at=0, pdelay=0, wodelay=0, peel=0, pw1=1, pwat=2, diag=0, h1ack=1, h2ack=1, pdelay2=0, woend=2, satom=2, cts=10, stlbl='L_h1poll', prd=1, t2=2, qk=2, wqflags='nt'):
    dyn = S is not None
    if probe is not None: stamps = True
    L = []
    def A(s): L.append("    " + s)
    def lab(s): L.append(s + ":")
    def nop(n): A(f"s_nop {n-1}")
    def C(s): L.append("    ; " + s)
    ldf = stf = "sc1"

    UNIT = UL * 1024
    US = UNIT.bit_length() - 1
    CW = UL // 4
    RING = 128 * 1024
    ring = RING // UNIT
    NB = 4096 // UL
    NBW = NB // 8
    WST = RING
    FL = RING + 16384
    QCNT = FL + 128
    PWF = FL + 132
    MARK = 0x5a
    QB = FL + 512
    MBOX = QB + 1024
    LDS = MBOX + 1024
    EPO = 0
    CTOFF = 32768
    QOFF = 64 << 10
    R1OFF = 1 << 20
    R2OFF = 3 << 19
    STOFF = 4 << 20
    cs = (128 ** -0.5) * math.log2(math.e)

    npiece = UL // piece
    span = npiece * pstride
    R = (4 << 20) // span
    G = pstride // (piece * 1024)
    assert R * G == NB and R >= 1
    if dyn:
        assert 2 * S - cah > ring + 2 and S + NB - 8 * S < 256
    else:
        assert NBW < 255

    sX, sK, sV, sWQ, sWO, sOUT, sDBG, sWS = 4, 6, 8, 10, 12, 14, 16, 18
    WS = f"s[{sWS}:{sWS+1}]"
    sPAIR, sSPL, sB, sHKV = 32, 33, 34, 35
    sTAG, sCS, sT8 = 36, 37, 53
    sHEAD, sHALF = 40, 42
    def stamp(idx):
        if stamps:
            A(f"s_memrealtime s[{60+2*idx}:{61+2*idx}]")
    def dump_stamps():
        A("s_getreg_b32 s59, hwreg(HW_REG_XCC_ID)")
        A("s_waitcnt lgkmcnt(0)")
        A("s_mul_i32 s41, s2, 6")
        A("s_add_u32 s41, s41, s3")
        A("s_lshl_b32 s41, s41, 6")
        A(f"s_add_u32 s41, s41, {STOFF}")
        A("s_mov_b64 exec, 1")
        A("v_mov_b32 v24, s41")
        for i in range(12):
            A(f"v_mov_b32 v25, s{60+2*i}")
            A(f"global_store_dword v24, v25, {WS} offset:{4*i}")
        A("v_mov_b32 v25, s59")
        A(f"global_store_dword v24, v25, {WS} offset:60")

    def vec_coords(iw):
        A("v_bfe_u32 v24, v0, 3, 2")
        A("v_bfe_u32 v25, v0, 2, 1")
        A("v_lshrrev_b32 v26, 5, v0")
        A(f"v_add_u32 v26, {iw}, v26")
        A("v_lshlrev_b32 v25, 10, v25")
        A("v_lshl_add_u32 v25, v24, 8, v25")
        A("v_lshl_add_u32 v25, v26, 6, v25")
        A("v_and_b32 v27, 3, v0")
        A("v_lshl_add_u32 v25, v27, 4, v25")
        A("v_and_b32 v27, 7, v0")
        A("v_lshlrev_b32 v27, 4, v27")
    def r1_addr(dst):
        A(f"v_lshl_add_u32 v{dst}, v26, 14, v27")
        A(f"v_lshl_add_u32 v{dst}, v24, 12, v{dst}")
        A(f"s_lshl_b32 s54, s{sB}, 3")
        A(f"s_add_u32 s54, s54, s{sSPL}")
        A(f"s_lshl_b32 s41, s{sHKV}, 16")
        A("s_lshl_b32 s45, s54, 7")
        A("s_add_u32 s41, s41, s45")
        A(f"s_add_u32 s41, s41, {R1OFF}")
        A(f"v_add_u32 v{dst}, s41, v{dst}")
    def r2_addr(dst):
        A(f"v_lshl_add_u32 v{dst}, v26, 15, v27")
        A(f"v_lshl_add_u32 v{dst}, v24, 13, v{dst}")
        A(f"s_lshl_b32 s41, s{sB}, 10")
        A("s_and_b32 s45, s2, 63")
        A("s_add_u32 s41, s41, s45")
        A("s_lshl_b32 s41, s41, 7")
        A(f"s_add_u32 s41, s41, {R2OFF}")
        A(f"v_add_u32 v{dst}, s41, v{dst}")

    C("workgroups past the 256 that carry work leave at once")
    A("s_cmp_ge_u32 s2, 256")
    A("s_cbranch_scc1 L_end")
    A("s_load_dwordx16 s[4:19], s[0:1], 0")
    stamp(0)
    A("v_lshrrev_b32 v1, 6, v0")
    A("v_and_b32 v0, 63, v0")
    A(f"s_lshr_b32 s{sPAIR}, s2, 3")
    A("v_readfirstlane_b32 s3, v1")
    A(f"s_and_b32 s{sSPL}, s2, 7")
    A(f"s_lshr_b32 s{sB}, s2, 6")
    A(f"s_and_b32 s{sHKV}, s{sPAIR}, 7")
    A("s_cmp_eq_u32 s3, 4")
    A("s_cbranch_scc1 L_loader")
    A("s_cmp_eq_u32 s3, 5")
    A("s_cbranch_scc1 L_claimer")

    A("v_lshrrev_b32 v7, 4, v0")
    A("v_and_b32 v21, 15, v0")
    A("v_and_b32 v22, 3, v0")
    A("v_bfe_u32 v23, v0, 2, 2")
    A("s_cmp_lg_u32 s3, 0")
    A("s_cbranch_scc1 L_noq")
    C("---- wave 0: partial q = x[:, 128b:128b+128] @ wq[128b:128b+128, 64 columns] for all four batches")
    A("s_mov_b32 s30, 0x400000"); A("s_mov_b32 s31, 0x20000")
    if qk == 4:
        A(f"s_lshl_b32 s41, s{sB}, 20")
        A(f"s_lshl_b32 s42, s{sHKV}, 10")
        A("s_add_u32 s41, s41, s42")
        A(f"s_lshl_b32 s42, s{sSPL}, 7")
        A("s_add_u32 s41, s41, s42")
        A("v_lshrrev_b32 v24, 3, v0")
        A("v_lshlrev_b32 v24, 13, v24")
        A("v_and_b32 v25, 7, v0")
        A("v_lshl_add_u32 v24, v25, 4, v24")
        A("v_lshlrev_b32 v25, 10, v22")
        A("v_lshl_add_u32 v25, v7, 4, v25")
        A(f"s_lshl_b32 s42, s{sB}, 8")
        A("v_add_u32 v25, s42, v25")
        A(f"s_mov_b32 m0, {WST}")
        A("s_waitcnt lgkmcnt(0)")
        A(f"s_mov_b32 s28, s{sWQ}"); A(f"s_mov_b32 s29, s{sWQ+1}")
        for i in range(16):
            if i:
                A(f"s_mov_b32 m0, {WST + i*1024}")
                A(f"s_add_u32 s41, s41, {8*8192}")
            if not diag & 2: A(f"buffer_load_dwordx4 v24, s[28:31], s41 offen {wflags} lds")
            if i == 3:
                for u in range(4):
                    A(f"global_load_dwordx4 v[{44+4*u}:{47+4*u}], v25, s[{sX}:{sX+1}] offset:{u*64}")
    else:
        A(f"s_lshr_b32 s41, s{sB}, 1")
        A("s_lshl_b32 s43, s41, 9")
        A("s_lshl_b32 s41, s41, 21")
        A(f"s_lshl_b32 s42, s{sHKV}, 10")
        A("s_add_u32 s41, s41, s42")
        A(f"s_lshl_b32 s42, s{sSPL}, 7")
        A("s_add_u32 s41, s41, s42")
        A(f"s_and_b32 s42, s{sB}, 1")
        A("s_lshl_b32 s42, s42, 6")
        A("s_add_u32 s41, s41, s42")
        A("v_lshrrev_b32 v24, 2, v0")
        A("v_lshlrev_b32 v24, 13, v24")
        A("v_lshl_add_u32 v24, v22, 4, v24")
        A("v_lshlrev_b32 v25, 10, v22")
        A("v_lshl_add_u32 v25, v23, 6, v25")
        A("v_lshl_add_u32 v25, v7, 4, v25")
        A("v_add_u32 v25, s43, v25")
        A(f"s_mov_b32 m0, {WST}")
        A("s_waitcnt lgkmcnt(0)")
        A(f"s_mov_b32 s28, s{sWQ}"); A(f"s_mov_b32 s29, s{sWQ+1}")
        for i in range(16):
            if i:
                A(f"s_mov_b32 m0, {WST + i*1024}")
                A(f"s_add_u32 s41, s41, {16*8192}")
            A(f"buffer_load_dwordx4 v24, s[28:31], s41 offen {wqflags} lds")
            if i == 3:
                for u in range(2):
                    A(f"global_load_dwordx4 v[{44+4*u}:{47+4*u}], v25, s[{sX}:{sX+1}] offset:{u*256}")
    A("s_branch L_st")
    lab("L_noq")
    A("s_cmp_lg_u32 s3, 1")
    A("s_cbranch_scc1 L_st")
    if dyn:
        C("---- wave 1 of the workgroup with split 0 clears its pair's work counter before its q part is published")
        A(f"s_cmp_lg_u32 s{sSPL}, 0")
        A("s_cbranch_scc1 L_st")
        A(f"s_lshl_b32 s42, s{sPAIR}, {cts}")
        A(f"s_add_u32 s42, s42, {CTOFF}")
        A("v_lshl_add_u32 v26, v0, 2, s42")
        A("v_mov_b32 v80, 0")
        A("s_waitcnt lgkmcnt(0)")
        A("s_mov_b32 exec_hi, 0")
        A(f"global_store_dword v26, v80, {WS} sc1")
        A("s_mov_b64 exec, -1")
    lab("L_st")
    A("s_waitcnt lgkmcnt(0)")
    A(f"s_load_dword s{sTAG}, {WS}, {EPO}")
    stamp(9)
    A("s_barrier")
    C("K fragment addresses: key*256 + ((t ^ (key>>2))*64) + ((g ^ (key&3))*16) + 4096*(wave's slice)")
    A(f"s_and_b32 s43, s3, {CW-1}")
    A("s_lshl_b32 s43, s43, 12")
    A("v_xor_b32 v24, v7, v22")
    A("v_lshlrev_b32 v24, 4, v24")
    A("v_lshl_add_u32 v24, v21, 8, v24")
    A("v_add_u32 v24, s43, v24")
    for t in range(4):
        A(f"v_xor_b32 v25, {t}, v23")
        A(f"v_lshl_add_u32 v{2+t}, v25, 6, v24")
    C("V fragment address: g*1024 + (l&15)*16 + 4096*(wave's slice)")
    A("v_lshlrev_b32 v6, 10, v7")
    A("v_lshl_add_u32 v6, v21, 4, v6")
    A("v_add_u32 v6, s43, v6")
    C("selector masks")
    A("v_mov_b32 v24, 0xffff")
    A("v_mov_b32 v25, 0xffff0000")
    A("v_mov_b32 v13, 0")
    A("v_mov_b32 v14, 0")
    A("v_cmp_eq_u32 vcc, 0, v22"); nop(2); A("v_cndmask_b32 v13, v13, v24, vcc")
    A("v_cmp_eq_u32 vcc, 1, v22"); nop(2); A("v_cndmask_b32 v13, v13, v25, vcc")
    A("v_cmp_eq_u32 vcc, 2, v22"); nop(2); A("v_cndmask_b32 v14, v14, v24, vcc")
    A("v_cmp_eq_u32 vcc, 3, v22"); nop(2); A("v_cndmask_b32 v14, v14, v25, vcc")
    A("v_mov_b32 v15, 0xff800000")
    A("v_mov_b32 v16, 0xff800000")
    A("v_mov_b32 v17, 0")
    A("v_mov_b32 v18, 1")
    A(f"v_mov_b32 v19, {FL}")
    for r in range(88, 96): A(f"v_mov_b32 v{r}, 0")
    A(f"s_mov_b32 s{sCS}, {f2u(cs):#x}")
    A("s_waitcnt lgkmcnt(0)")
    A(f"s_add_u32 s{sTAG}, s{sTAG}, 1")
    A(f"s_and_b32 s{sT8}, s{sTAG}, 0xff")
    A("s_cmp_eq_u32 s3, 0")
    A("s_cbranch_scc1 L_qprod")
    A("s_cmp_lg_u32 s3, 1")
    A("s_cbranch_scc1 L_qgather")
    A("s_waitcnt vmcnt(0)")
    A(f"ds_write_b32 v19, v18 offset:{PWF-FL}")
    A("s_branch L_qgather")
    lab("L_qprod")
    if qk == 4:
        A("v_lshl_add_u32 v24, v7, 3, v23")
        A("v_lshlrev_b32 v24, 7, v24")
        A("v_lshl_add_u32 v24, v22, 3, v24")
        A(f"v_add_u32 v24, {WST}, v24")
        for t in range(4):
            A(f"s_waitcnt vmcnt({12 - 4*t})")
            for ct in range(4):
                r = 112 + 16*t + 4*ct
                A(f"ds_read_b64_tr_b16 v[{r}:{r+1}], v24 offset:{t*4096 + ct*32}")
                A(f"ds_read_b64_tr_b16 v[{r+2}:{r+3}], v24 offset:{t*4096 + ct*32 + 512}")
            if t:
                A("s_waitcnt lgkmcnt(8)")
                u = t - 1
                for ct in range(4):
                    r = 112 + 16*u + 4*ct
                    cin = "0" if u == 0 else f"v[{60+4*ct}:{63+4*ct}]"
                    A(f"v_mfma_f32_16x16x32_bf16 v[{60+4*ct}:{63+4*ct}], v[{r}:{r+3}], v[{44+4*u}:{47+4*u}], {cin}")
        stamp(10)
        A("s_waitcnt lgkmcnt(0)")
        for ct in range(4):
            r = 112 + 48 + 4*ct
            A(f"v_mfma_f32_16x16x32_bf16 v[{60+4*ct}:{63+4*ct}], v[{r}:{r+3}], v[56:59], v[{60+4*ct}:{63+4*ct}]")
        A("v_lshlrev_b32 v25, 16, v22")
        A("v_lshl_add_u32 v25, v23, 6, v25")
        A("v_lshl_add_u32 v25, v7, 4, v25")
        A(f"s_lshl_b32 s41, s{sHKV}, 13")
        A(f"s_lshl_b32 s42, s{sB}, 11")
        A("s_add_u32 s41, s41, s42")
        A(f"s_lshl_b32 s42, s{sSPL}, 8")
        A("s_add_u32 s41, s41, s42")
        A(f"s_add_u32 s41, s41, {QOFF}")
        A("v_add_u32 v25, s41, v25")
        A("v_mov_b32 v27, 0xffffff00")
        for ct in range(1, 4):
            for r in range(4):
                A(f"v_mov_b32_dpp v{60+r}, v{60+4*ct+r} quad_perm:[0,1,2,3] row_mask:0xf bank_mask:{1<<ct:#x}")
    else:
        A("v_lshl_add_u32 v24, v7, 3, v23")
        A("v_lshlrev_b32 v24, 6, v24")
        A("v_lshl_add_u32 v24, v22, 3, v24")
        A(f"v_add_u32 v24, {WST}, v24")
        def acc(ct, tq): return 64 + 16*ct + 4*tq
        def mf(pair):
            for t in (2*pair, 2*pair+1):
                for ct in range(2):
                    r = 112 + 8*t + 4*ct
                    d = acc(ct, t & 3)
                    cin = "0" if t < 4 else f"v[{d}:{d+3}]"
                    A(f"v_mfma_f32_16x16x32_bf16 v[{d}:{d+3}], v[{r}:{r+3}], v[{44+4*(t>>2)}:{47+4*(t>>2)}], {cin}")
        for pair in range(4):
            A(f"s_waitcnt vmcnt({12 - 4*pair})")
            for t in (2*pair, 2*pair+1):
                for ct in range(2):
                    r = 112 + 8*t + 4*ct
                    A(f"ds_read_b64_tr_b16 v[{r}:{r+1}], v24 offset:{t*2048 + ct*32}")
                    A(f"ds_read_b64_tr_b16 v[{r+2}:{r+3}], v24 offset:{t*2048 + ct*32 + 256}")
            if pair:
                A("s_waitcnt lgkmcnt(8)")
                mf(pair - 1)
        stamp(10)
        A("s_waitcnt lgkmcnt(0)")
        mf(3)
        A("v_lshlrev_b32 v25, 15, v22")
        A("v_lshl_add_u32 v25, v23, 6, v25")
        A("v_lshl_add_u32 v25, v7, 4, v25")
        A(f"s_lshl_b32 s41, s{sHKV}, 12")
        A(f"s_lshr_b32 s42, s{sB}, 1")
        A("s_lshl_b32 s42, s42, 11")
        A("s_add_u32 s41, s41, s42")
        A(f"s_lshl_b32 s42, s{sSPL}, 8")
        A("s_add_u32 s41, s41, s42")
        A(f"s_and_b32 s42, s{sB}, 1")
        A("s_lshl_b32 s42, s42, 7")
        A("s_add_u32 s41, s41, s42")
        A(f"s_add_u32 s41, s41, {QOFF}")
        A("v_add_u32 v25, s41, v25")
        A("v_mov_b32 v27, 0xffffff00")
        for (src, own, sh, bm) in ((acc(0,1), acc(0,0), "row_shl:4", 1), (acc(1,0), acc(1,1), "row_shr:4", 2),
                                   (acc(0,2), 60, "row_shl:8", 1), (acc(1,2), 60, "row_shl:4", 2),
                                   (acc(0,3), 60, "row_shl:12", 1), (acc(1,3), 60, "row_shl:8", 2)):
            for r in range(4):
                A(f"v_add_f32_dpp v{60+r}, v{src+r}, v{own+r} {sh} row_mask:0xf bank_mask:{bm:#x}")
        for r in range(88, 96): A(f"v_mov_b32 v{r}, 0")
    for r in range(4): A(f"v_and_or_b32 v{60+r}, v{60+r}, v27, s{sT8}")
    A(f"s_mov_b32 s44, {spin}")
    lab("L_pww")
    A(f"ds_read_b32 v20, v19 offset:{PWF-FL}")
    A("s_sub_u32 s44, s44, 1")
    A("s_cbranch_scc1 L_pww_x")
    A("s_waitcnt lgkmcnt(0)")
    A("v_readfirstlane_b32 s49, v20")
    A("s_cmp_lg_u32 s49, 0")
    A("s_cbranch_scc0 L_pww")
    lab("L_pww_x")
    if qk == 2:
        A("s_mov_b32 exec_lo, 0x00ff00ff")
        A("s_mov_b32 exec_hi, 0x00ff00ff")
    if not diag & 4: A(f"global_store_dwordx4 v25, v[60:63], {WS} {stf}")
    A("s_mov_b64 exec, -1")
    stamp(1)
    lab("L_qgather")
    C("---- consumer wave w sums the four partials of head w's q, rounds to bf16 and shares it through LDS")
    A("v_and_b32 v25, 31, v0")
    A("v_lshlrev_b32 v24, 4, v25")
    A("v_lshrrev_b32 v26, 5, v0")
    A(f"v_lshl_add_u32 v24, v26, {12 if qk == 4 else 11}, v24")
    A(f"s_lshl_b32 s41, s{sPAIR}, {13 if qk == 4 else 12}")
    A("s_lshl_b32 s42, s3, 9")
    A("s_add_u32 s41, s41, s42")
    A(f"s_add_u32 s41, s41, {QOFF}")
    A("v_add_u32 v148, s41, v24")
    A("s_lshl_b32 s42, s3, 8")
    A(f"s_add_u32 s42, s42, {QB}")
    A("v_lshl_add_u32 v149, v25, 3, s42")
    C("---- addresses of the final phase")
    vOSC, vMLW, vH1O, vS2W, vS2R, vR2P, vH2A, vH2B, vOUT, vMSK, vWO = range(112, 123)
    A(f"s_lshl_b32 s{sHEAD}, s{sHKV}, 2")
    A(f"s_lshr_b32 s45, s{sSPL}, 1")
    A(f"s_add_u32 s{sHEAD}, s{sHEAD}, s45")
    A(f"s_and_b32 s{sHALF}, s{sSPL}, 1")
    A("v_lshlrev_b32 v20, 4, v0")
    A("s_lshl_b32 s43, s3, 11")
    A(f"v_add_u32 v{vS2W}, s43, v20")
    A(f"v_add_u32 v{vOSC}, {WST}, v{vS2W}")
    A("s_lshl_b32 s43, s3, 5")
    A(f"s_add_u32 s43, s43, {WST+8192}")
    A(f"v_lshl_add_u32 v{vMLW}, v23, 3, s43")
    A("s_and_b32 s43, s3, 1")
    A("s_lshl_b32 s43, s43, 1")
    vec_coords("s43")
    A(f"v_mov_b32 v{vS2R}, v25")
    r2_addr(vR2P)
    A("v_lshl_add_u32 v24, v23, 3, v22")
    A("v_lshlrev_b32 v24, 7, v24")
    A("v_lshl_add_u32 v24, v7, 4, v24")
    A(f"s_lshl_b32 s41, s{sHEAD}, 2")
    A(f"s_lshl_b32 s45, s{sHALF}, 1")
    A("s_add_u32 s41, s41, s45")
    A("s_lshr_b32 s45, s3, 1")
    A("s_add_u32 s41, s41, s45")
    A("s_lshl_b32 s46, s41, 5")
    A("s_lshl_b32 s41, s41, 12")
    A("s_and_b32 s45, s3, 1")
    A("s_lshl_b32 s43, s45, 2")
    A("s_add_u32 s46, s46, s43")
    A("s_lshl_b32 s45, s45, 6")
    A("s_add_u32 s41, s41, s45")
    A(f"s_add_u32 s41, s41, {R1OFF}")
    A(f"v_add_u32 v{vH1O}, s41, v24")
    A("s_lshl_b32 s46, s46, 10")
    A(f"s_lshl_b32 s45, s{sB}, 8")
    A("s_add_u32 s46, s46, s45")
    A(f"v_lshlrev_b32 v{vWO}, 10, v7")
    A(f"v_lshl_add_u32 v{vWO}, v21, 4, v{vWO}")
    A(f"v_add_u32 v{vWO}, s46, v{vWO}")
    A("v_lshrrev_b32 v24, 1, v0")
    A("v_lshlrev_b32 v24, 7, v24")
    A("v_and_b32 v25, 1, v0")
    A("v_lshl_add_u32 v24, v25, 4, v24")
    A("s_and_b32 s41, s2, 63")
    A("s_lshl_b32 s41, s41, 13")
    A(f"s_lshl_b32 s45, s{sB}, 5")
    A("s_add_u32 s41, s41, s45")
    A(f"s_add_u32 s41, s41, {R2OFF}")
    A(f"v_add_u32 v{vH2A}, s41, v24")
    A(f"v_add_u32 v{vH2B}, 0x1000, v{vH2A}")
    A("s_bfe_u32 s41, s2, 0x20002")
    A("s_lshl_b32 s41, s41, 10")
    A("s_bfe_u32 s45, s2, 0x20004")
    A("s_lshl_b32 s45, s45, 8")
    A("s_add_u32 s41, s41, s45")
    A("s_and_b32 s45, s2, 3")
    A("s_lshl_b32 s45, s45, 6")
    A("s_add_u32 s41, s41, s45")
    A(f"s_lshl_b32 s45, s{sB}, 2")
    A("s_add_u32 s41, s41, s45")
    A("v_and_b32 v24, 1, v7")
    A("v_lshlrev_b32 v24, 5, v24")
    A("v_lshrrev_b32 v25, 1, v7")
    A("v_lshl_add_u32 v24, v25, 4, v24")
    A(f"v_add_u32 v{vOUT}, s41, v24")
    A(f"v_mov_b32 v{vMSK}, 0xffffff00")
    A("s_mov_b32 s57, 0x0c04000c")
    A("s_mov_b32 s58, 0x04020100")
    A(f"s_mov_b32 s44, {spin}")
    def ready_wait(lbl, n):
        lab(lbl)
        A("ds_read_b32 v20, v19")
        A("s_sub_u32 s44, s44, 1")
        A(f"s_cbranch_scc1 {lbl}_x")
        A("s_waitcnt lgkmcnt(0)")
        A("v_readfirstlane_b32 s49, v20")
        A(f"s_cmp_ge_u32 s49, {n}")
        A(f"s_cbranch_scc0 {lbl}")
        lab(f"{lbl}_x")
    if qdelay: ready_wait("L_qdel", qdelay * 16 // UL)
    def poll(lbl, loads, tagged):
        lab(lbl)
        if stamps and lbl == stlbl:
            A("s_mov_b32 s78, s82")
            stamp(11)
            A("s_waitcnt lgkmcnt(0)")
        for ld in loads: A(ld)
        A("s_sub_u32 s44, s44, 1")
        A(f"s_cbranch_scc1 {lbl}_x")
        A("s_waitcnt vmcnt(0)")
        t = 68
        if len(tagged) == 8:
            a = tagged
            A(f"v_xor_b32 v{t}, s{sT8}, v{a[0]}")
            for j in range(1, 8): A(f"v_xor_b32 v{t+j}, s{sT8}, v{a[j]}")
            A(f"v_or3_b32 v{t}, v{t}, v{t+1}, v{t+2}")
            A(f"v_or3_b32 v{t+3}, v{t+3}, v{t+4}, v{t+5}")
            A(f"v_or3_b32 v{t}, v{t}, v{t+6}, v{t+7}")
            A(f"v_or_b32 v{t}, v{t}, v{t+3}")
        elif len(tagged) == 4:
            for j in range(4): A(f"v_xor_b32 v{t+j}, s{sT8}, v{tagged[j]}")
            A(f"v_or3_b32 v{t}, v{t}, v{t+1}, v{t+2}")
            A(f"v_or_b32 v{t}, v{t}, v{t+3}")
        else:
            A(f"v_xor_b32 v{t}, s{sT8}, v{tagged[0]}")
            A(f"v_xor_b32 v{t+1}, s{sT8}, v{tagged[1]}")
            A(f"v_or_b32 v{t}, v{t}, v{t+1}")
        A(f"v_and_b32 v{t}, 0xff, v{t}")
        A(f"v_cmp_ne_u32 vcc, 0, v{t}")
        if len(tagged) >= 4:
            A("s_and_b64 exec, exec, vcc")
        else:
            A("s_or_b32 s45, vcc_lo, vcc_hi")
            A("s_lshr_b32 s46, s45, 16")
            A("s_or_b32 s45, s45, s46")
            A("s_pack_ll_b32_b16 s46, s45, s45")
            A("s_mov_b32 s47, s46")
            A("s_and_b64 exec, exec, s[46:47]")
        if psleep:
            A(f"s_cbranch_scc0 {lbl}_x")
            A(f"s_sleep {psleep}")
            A(f"s_branch {lbl}")
        else:
            A(f"s_cbranch_scc1 {lbl}")
        lab(f"{lbl}_x")
        A("s_mov_b64 exec, -1")
        A("s_waitcnt vmcnt(0)")
    if qk == 2: poll("L_qpoll", [f"global_load_dwordx4 v[44:47], v148, {WS} {ldf}"], list(range(44, 48)))
    elif not diag & 4: poll("L_qpoll", [f"global_load_dwordx4 v[44:47], v148, {WS} {ldf}",
                     f"global_load_dwordx4 v[48:51], v148, {WS} offset:2048 {ldf}"], list(range(44, 52)))
    if qk == 4:
        for r in range(4): A(f"v_add_f32 v{44+r}, v{44+r}, v{48+r}")
    for r in range(4): A(f"v_mov_b32 v{48+r}, v{44+r}")
    for r in range(4): A(f"v_permlane32_swap_b32 v{44+r}, v{48+r}")
    for r in range(4): A(f"v_add_f32 v{44+r}, v{44+r}, v{48+r}")
    A("v_cvt_pk_bf16_f32 v44, v44, v45")
    A("v_cvt_pk_bf16_f32 v45, v46, v47")
    A("ds_write_b64 v149, v[44:45]")
    A("v_lshlrev_b32 v24, 8, v23")
    A("v_lshl_add_u32 v24, v7, 4, v24")
    A(f"v_add_u32 v24, {QB}, v24")
    A("s_mov_b64 exec, 1")
    A(f"ds_add_u32 v19, v18 offset:{QCNT-FL}")
    A("s_mov_b64 exec, -1")
    lab("L_qw")
    A(f"ds_read_b32 v20, v19 offset:{QCNT-FL}")
    A("s_sub_u32 s44, s44, 1")
    A("s_cbranch_scc1 L_qw_x")
    A("s_waitcnt lgkmcnt(0)")
    A("v_readfirstlane_b32 s49, v20")
    A("s_cmp_ge_u32 s49, 4")
    A("s_cbranch_scc0 L_qw")
    lab("L_qw_x")
    for t in range(4): A(f"ds_read_b128 v[{28+4*t}:{31+4*t}], v24 offset:{t*64}")
    stamp(2)
    def wo_loads():
        for tau in range(4):
            if diag & 1: break
            if tau: A(f"v_add_u32 v{vWO}, 0x2000, v{vWO}")
            A(f"global_load_dwordx4 v[{96+4*tau}:{99+4*tau}], v{vWO}, s[{sWO}:{sWO+1}] {wflags}")
    if not wodelay and not woend:
        C("---- prefetch this wave's 16 rows x 128 columns of wo")
        wo_loads()
    C("---- main loop; this wave takes 16 keys of each of its blocks")
    step = 2 * (4 // CW)
    if CW == 4:
        A("s_mov_b32 s47, 0")
        A("s_mov_b32 s48, 0")
    else:
        A("s_and_b32 s47, s3, 2")
        A(f"s_lshl_b32 s48, s47, {US}")
    A("s_mov_b32 s49, 0")
    A("s_mov_b32 s55, 0")
    lab("L_blk")
    for t in range(4): A(f"v_add_u32 v{8+t}, s48, v{2+t}")
    A(f"s_add_u32 s50, s48, {UNIT}")
    A("v_add_u32 v12, s50, v6")
    A("s_cmp_gt_u32 s49, s47")
    A("s_cbranch_scc1 L_kok")
    A(f"s_mov_b32 s44, {spin}")
    lab("L_kpoll")
    A("s_lshr_b32 s55, s55, 16")
    A("s_sub_u32 s55, s55, 1")
    A("s_cmp_ge_u32 s47, s55")
    A("s_cbranch_scc1 L_loopend")
    A("ds_read_b32 v20, v19")
    A("s_sub_u32 s44, s44, 1")
    A("s_cbranch_scc1 L_loopend")
    A("s_waitcnt lgkmcnt(0)")
    A("v_readfirstlane_b32 s55, v20")
    A("s_and_b32 s49, s55, 0xffff")
    A("s_cmp_gt_u32 s49, s47")
    A("s_cbranch_scc0 L_kpoll")
    lab("L_kok")
    for t in range(4): A(f"ds_read_b128 v[{44+4*t}:{47+4*t}], v{8+t}")
    A(f"s_lshr_b32 s51, s48, {US-2}")
    A("s_add_u32 s47, s47, 1")
    A("v_add_u32 v21, s51, v19")
    for t in range(4):
        A(f"s_waitcnt lgkmcnt({3-t})")
        cin = "0" if t == 0 else "v[76:79]"
        A(f"v_mfma_f32_16x16x32_bf16 v[76:79], v[{44+4*t}:{47+4*t}], v[{28+4*t}:{31+4*t}], {cin}")
    A("s_mov_b64 exec, 1")
    A("ds_add_u32 v21, v18 offset:4")
    A("s_mov_b64 exec, -1")
    A("s_cmp_gt_u32 s49, s47")
    A("s_cbranch_scc1 L_vok")
    nop(3)
    A("v_max3_f32 v20, v76, v77, v78")
    A("v_max_f32 v20, v20, v79")
    A("v_cmp_gt_f32 vcc, v20, v15")
    A("s_cbranch_vccz L_nomax1")
    A("s_mov_b32 s52, 1")
    A("s_branch L_newmax")
    lab("L_nomax1")
    def softmax():
        for r in range(4): A(f"v_fma_f32 v{76+r}, v{76+r}, s{sCS}, -v16")
        for r in range(4): A(f"v_exp_f32 v{76+r}, v{76+r}")
        nop(1)
        for r in range(4): A(f"v_cvt_pk_bf16_f32 v{24+r}, v{76+r}, v{76+r}")
        A("v_add_f32 v76, v76, v77")
        A("v_add_f32 v78, v78, v79")
        for r in range(4):
            A(f"v_and_b32 v{80+2*r}, v{24+r}, v13")
            A(f"v_and_b32 v{81+2*r}, v{24+r}, v14")
        A("v_add_f32 v76, v76, v78")
        A("v_add_f32 v17, v17, v76")
    softmax()
    A(f"s_mov_b32 s44, {spin}")
    lab("L_vpoll")
    A("ds_read_b32 v20, v19")
    A("s_sub_u32 s44, s44, 1")
    A("s_cbranch_scc1 L_vok1")
    A("s_waitcnt lgkmcnt(0)")
    A("v_readfirstlane_b32 s55, v20")
    A("s_and_b32 s49, s55, 0xffff")
    A("s_cmp_gt_u32 s49, s47")
    A("s_cbranch_scc0 L_vpoll")
    lab("L_vok1")
    for tau in range(4): A(f"ds_read_b128 v[{60+4*tau}:{63+4*tau}], v12 offset:{tau*256}")
    A("s_branch L_pv")
    lab("L_vok")
    for tau in range(4): A(f"ds_read_b128 v[{60+4*tau}:{63+4*tau}], v12 offset:{tau*256}")
    A("v_max3_f32 v20, v76, v77, v78")
    A("v_max_f32 v20, v20, v79")
    A("v_cmp_gt_f32 vcc, v20, v15")
    A("s_cbranch_vccz L_nomax2")
    A("s_mov_b32 s52, 0")
    lab("L_newmax")
    C("the running max rose for some head: take the true max over the 16 keys and rescale")
    A("v_mov_b32 v24, v20")
    nop(2)
    A("v_permlane16_swap_b32 v20, v24")
    nop(1)
    A("v_max_f32 v20, v20, v24")
    A("v_mov_b32 v24, v20")
    nop(2)
    A("v_permlane32_swap_b32 v20, v24")
    nop(1)
    A("v_max3_f32 v20, v20, v24, v15")
    A("v_sub_f32 v24, v15, v20")
    A(f"v_mul_f32 v24, s{sCS}, v24")
    A("v_exp_f32 v24, v24")
    A("v_mov_b32 v15, v20")
    A(f"v_mul_f32 v16, s{sCS}, v20")
    A("v_mul_f32 v17, v17, v24")
    for r in range(88, 96): A(f"v_mul_f32 v{r}, v{r}, v24")
    A("s_cmp_eq_u32 s52, 1")
    A("s_cbranch_scc1 L_nomax1")
    lab("L_nomax2")
    softmax()
    lab("L_pv")
    A(f"s_add_u32 s47, s47, {step-1}")
    A(f"s_add_u32 s48, s48, {step*UNIT}")
    A(f"s_and_b32 s48, s48, {RING-1}")
    for tau in range(4):
        A(f"s_waitcnt lgkmcnt({3-tau})")
        A(f"v_mfma_f32_16x16x16_bf16 v[88:91], v[{60+4*tau}:{61+4*tau}], v[{80+2*tau}:{81+2*tau}], v[88:91]")
        A(f"v_mfma_f32_16x16x16_bf16 v[92:95], v[{62+4*tau}:{63+4*tau}], v[{80+2*tau}:{81+2*tau}], v[92:95]")
    A("s_mov_b64 exec, 1")
    A("ds_add_u32 v21, v18 offset:8")
    A("s_mov_b64 exec, -1")
    if wodelay:
        A("s_lshr_b32 s50, s47, 2")
        A(f"s_cmp_lg_u32 s50, {wodelay * 16 // UL // 4}")
        A("s_cbranch_scc1 L_blk")
        if CW == 4:
            A("s_bitcmp1_b32 s47, 1")
            A("s_cbranch_scc1 L_blk")
        C("---- prefetch this wave's 16 rows x 128 columns of wo")
        wo_loads()
    A("s_branch L_blk")
    lab("L_loopend")
    if sync_at:
        A(f"s_add_u32 s90, s60, {sync_at + 1023}")
        A("s_and_b32 s90, s90, 0xfffffc00")
        lab("L_sync")
        A("s_memrealtime s[92:93]")
        A("s_waitcnt lgkmcnt(0)")
        A("s_sub_u32 s92, s92, s90")
        A("s_cmp_lt_i32 s92, 0")
        A("s_cbranch_scc1 L_sync")
    stamp(3)
    if woend == 1:
        C("---- this wave's 16 rows x 128 columns of wo travel while the partial results are exchanged")
        wo_loads()
    C("---- hand the four waves' partial results to the publishing waves through LDS")
    A("v_mov_b32 v24, v17")
    A(f"ds_write_b128 v{vOSC}, v[88:91]")
    A(f"s_mov_b32 s44, {spin}")
    A("v_permlane16_swap_b32 v17, v24")
    A(f"ds_write_b128 v{vOSC}, v[92:95] offset:1024")
    A("v_add_f32 v17, v17, v24")
    A("v_mov_b32 v24, v17")
    nop(2)
    A("v_permlane32_swap_b32 v17, v24")
    nop(1)
    A("v_add_f32 v17, v17, v24")
    A(f"ds_write_b64 v{vMLW}, v[16:17]")
    if woend == 2:
        wo_loads()
    A("s_waitcnt lgkmcnt(0)")
    A("s_barrier")
    if woend == 3:
        wo_loads()
    stamp(4)
    C("---- hand-off 1: gather the 8 splits x 4 batches of this wave's 16 rows of one head")
    if h1ack: A("s_barrier")
    if pdelay: A(f"s_sleep {pdelay}")
    poll("L_h1poll", [f"global_load_dwordx4 v[52:55], v{vH1O}, {WS} {ldf}",
                      f"global_load_dwordx4 v[56:59], v{vH1O}, {WS} offset:512 {ldf}"], [55, 59])
    stamp(5)
    if stamps: A(f"s_sub_u32 s80, {spin}, s44")
    A("v_max_f32 v20, v55, v59")
    A("v_perm_b32 v44, v53, v52, s57")
    A("v_perm_b32 v45, v57, v56, s57")
    A("v_max_f32_dpp v20, v20, v20 quad_perm:[1,0,3,2] row_mask:0xf bank_mask:0xf")
    A("v_perm_b32 v44, v54, v44, s58")
    A("v_perm_b32 v45, v58, v45, s58")
    A("v_max_f32_dpp v20, v20, v20 quad_perm:[2,3,0,1] row_mask:0xf bank_mask:0xf")
    A("v_sub_f32 v46, v55, v20")
    A("v_sub_f32 v47, v59, v20")
    A("v_exp_f32 v46, v46")
    A("v_exp_f32 v47, v47")
    A(f"s_mov_b32 s44, {spin}")
    A("v_mul_f32 v60, v52, v46")
    A("v_add_f32 v20, v46, v47")
    A("v_mul_f32 v61, v53, v46")
    A("v_mul_f32 v62, v54, v46")
    A("v_mul_f32 v63, v44, v46")
    A("v_add_f32_dpp v20, v20, v20 quad_perm:[1,0,3,2] row_mask:0xf bank_mask:0xf")
    A("v_fmac_f32 v60, v56, v47")
    A("v_fmac_f32 v61, v57, v47")
    A("v_add_f32_dpp v20, v20, v20 quad_perm:[2,3,0,1] row_mask:0xf bank_mask:0xf")
    A("v_fmac_f32 v62, v58, v47")
    A("v_fmac_f32 v63, v45, v47")
    A("v_rcp_f32 v20, v20")
    for r in range(4): A(f"v_add_f32_dpp v{60+r}, v{60+r}, v{60+r} quad_perm:[1,0,3,2] row_mask:0xf bank_mask:0xf")
    for r in range(4): A(f"v_add_f32_dpp v{60+r}, v{60+r}, v{60+r} quad_perm:[2,3,0,1] row_mask:0xf bank_mask:0xf")
    for r in range(4): A(f"v_mul_f32 v{60+r}, v{60+r}, v20")
    for r in range(4): A(f"v_cvt_pk_bf16_f32 v{60+r}, v{60+r}, v{60+r}")
    for r in range(4):
        A(f"v_and_b32 v{80+2*r}, v{60+r}, v13")
        A(f"v_and_b32 v{81+2*r}, v{60+r}, v14")
        if r:
            tau = r - 1
            c0 = "0" if tau == 0 else "v[88:91]"
            c1 = "0" if tau == 0 else "v[92:95]"
            A(f"v_mfma_f32_16x16x16_bf16 v[88:91], v[{96+4*tau}:{97+4*tau}], v[{80+2*tau}:{81+2*tau}], {c0}")
            A(f"v_mfma_f32_16x16x16_bf16 v[92:95], v[{98+4*tau}:{99+4*tau}], v[{80+2*tau}:{81+2*tau}], {c1}")
    A("v_mfma_f32_16x16x16_bf16 v[88:91], v[108:109], v[86:87], v[88:91]")
    A("v_mfma_f32_16x16x16_bf16 v[92:95], v[110:111], v[86:87], v[92:95]")
    C("second scratch area: the start of the ring is free by now")
    A("s_cmp_ge_u32 s3, 2")
    nop(6)
    A(f"ds_write_b128 v{vS2W}, v[88:91]")
    A(f"ds_write_b128 v{vS2W}, v[92:95] offset:1024")
    A("s_waitcnt lgkmcnt(0)")
    A("s_barrier")
    A("s_cbranch_scc1 L_h2")
    for w in range(4): A(f"ds_read_b128 v[{60+4*w}:{63+4*w}], v{vS2R} offset:{w*2048}")
    A("s_waitcnt lgkmcnt(2)")
    A("v_pk_add_f32 v[60:61], v[60:61], v[64:65]")
    A("v_pk_add_f32 v[62:63], v[62:63], v[66:67]")
    A("s_waitcnt lgkmcnt(0)")
    A("v_pk_add_f32 v[68:69], v[68:69], v[72:73]")
    A("v_pk_add_f32 v[70:71], v[70:71], v[74:75]")
    A("v_pk_add_f32 v[60:61], v[60:61], v[68:69]")
    A("v_pk_add_f32 v[62:63], v[62:63], v[70:71]")
    for r in range(4): A(f"v_and_or_b32 v{60+r}, v{60+r}, v{vMSK}, s{sT8}")
    A(f"global_store_dwordx4 v{vR2P}, v[60:63], {WS} {stf}")
    stamp(6)
    if h2ack:
        if h2ack == 1: A("s_waitcnt vmcnt(0)")
        A("s_barrier")
    A("s_branch L_fin")
    lab("L_h2")
    A("s_cmp_eq_u32 s3, 3")
    if h2ack: A("s_barrier")
    A("s_cbranch_scc1 L_fin")
    if pdelay2: A(f"s_sleep {pdelay2}")
    stamp(6)
    C("---- hand-off 2: sum 64 row-slices for 8 outputs of one batch")
    poll("L_h2poll", [f"global_load_dwordx4 v[52:55], v{vH2A}, {WS} {ldf}",
                      f"global_load_dwordx4 v[56:59], v{vH2B}, {WS} {ldf}"], list(range(52, 60)))
    stamp(7)
    if stamps and stlbl == 'L_h2poll': A(f"s_sub_u32 s80, {spin}, s44")
    A("v_pk_add_f32 v[52:53], v[52:53], v[56:57]")
    A("v_pk_add_f32 v[54:55], v[54:55], v[58:59]")
    nop(1)
    A("v_permlane32_swap_b32 v52, v53")
    A("v_permlane32_swap_b32 v54, v55")
    nop(1)
    A("v_add_f32 v52, v52, v53")
    A("v_add_f32 v54, v54, v55")
    nop(2)
    A("v_permlane16_swap_b32 v52, v54")
    nop(1)
    A("v_add_f32 v52, v52, v54")
    for dpp in ("quad_perm:[2,3,0,1]", "row_ror:4", "row_ror:8"):
        nop(2)
        A(f"v_add_f32_dpp v52, v52, v52 {dpp} row_mask:0xf bank_mask:0xf")
    A("s_mov_b32 s46, 0x00010001")
    A("s_mov_b32 s47, 0x00010001")
    A("v_mov_b32_dpp v53, v52 quad_perm:[1,0,3,2] row_mask:0xf bank_mask:0xf")
    A("s_mov_b64 exec, s[46:47]")
    A("v_cvt_pk_bf16_f32 v52, v52, v53")
    A(f"global_store_dword v{vOUT}, v52, s[{sOUT}:{sOUT+1}] {outf}")
    A("s_cmp_lg_u32 s2, 0")
    A("s_cbranch_scc1 L_fin")
    C("every workgroup has published tagged data by now: advance the hand-off epoch")
    A("s_mov_b64 exec, 1")
    A(f"v_mov_b32 v25, s{sTAG}")
    A("v_mov_b32 v24, 0")
    A(f"global_store_dword v24, v25, {WS} offset:{EPO}")
    lab("L_fin")
    if stamps:
        A("s_waitcnt vmcnt(0)")
        stamp(8)
        if probe is not None:
            A("s_waitcnt lgkmcnt(0)")
            pw, pi, pT = probe
            A(f"s_cmp_lg_u32 s3, {pw}")
            A("s_cbranch_scc1 L_end")
            A(f"s_add_u32 s90, s{60+2*pi}, {pT}")
            lab("L_probe")
            A("s_memrealtime s[92:93]")
            A("s_waitcnt lgkmcnt(0)")
            A("s_sub_u32 s92, s92, s90")
            A("s_cmp_lt_i32 s92, 0")
            A("s_cbranch_scc1 L_probe")
            A("s_endpgm")
        dump_stamps()
    A("s_endpgm")

    lab("L_loader")
    if prio: A(f"s_setprio {prio}")
    A("v_lshrrev_b32 v7, 4, v0")
    A("v_and_b32 v8, 15, v0")
    for i in range(4):
        A(f"v_add_u32 v9, {4*i}, v7")
        A("v_xor_b32 v9, v9, v8")
        A("v_lshlrev_b32 v9, 4, v9")
        A(f"v_lshl_add_u32 v{2+i}, v7, 8, v9")
    A("v_lshlrev_b32 v6, 4, v0")
    A(f"v_mov_b32 v10, {FL}")
    A(f"s_lshl_b32 s40, s{sPAIR}, 22")
    A("s_mov_b32 s41, 0")
    A("s_mov_b32 s42, 0")
    A(f"s_mov_b32 s43, {0 if peel else -((UL - 1 + depth) // UL)}")
    A("v_mov_b32 v9, 0")
    A("v_mov_b32 v12, 0")
    A("s_mov_b32 s51, 0")
    A(f"v_mov_b32 v13, {FL}")
    A("s_mov_b32 s22, 0x8000000"); A("s_mov_b32 s23, 0x20000")
    A("s_mov_b32 s26, 0x8000000"); A("s_mov_b32 s27, 0x20000")
    def addr(static=True):
        if static:
            A("s_lshl_b32 s46, s41, 3")
            A(f"s_add_u32 s46, s46, s{sSPL}")
        A(f"s_lshr_b32 s47, s46, {G.bit_length()-1}")
        A(f"s_and_b32 s48, s46, {G-1}")
        if rrot:
            A(f"s_mul_i32 s49, s{sPAIR}, {rrot}")
            A("s_add_u32 s47, s47, s49")
            A(f"s_and_b32 s47, s47, {R-1}")
        if grot:
            A(f"s_mul_i32 s49, s{sPAIR}, {grot}")
            A("s_add_u32 s48, s48, s49")
            A(f"s_and_b32 s48, s48, {G-1}")
        A(f"s_mul_i32 s47, s47, {span}")
        A(f"s_mul_i32 s48, s48, {piece*1024}")
        A("s_add_u32 s44, s47, s48")
        A("s_add_u32 s44, s44, s40")
    grp = min(piece, 4)
    pubpos = (UL - 1 + depth) % UL
    publag = (UL - 1 + depth) // UL
    rapos = UL - 5
    assert cah >= publag
    uid = [0]
    def unit(which, u_static=None):
        srd = "s[20:23]" if which == 0 else "s[24:27]"
        k = uid[0]; uid[0] += 1
        if u_static is None or u_static >= ring:
            if which == 1: A("s_waitcnt lgkmcnt(0)")
            A("v_readfirstlane_b32 s50, v12")
            A("s_cmp_ge_u32 s50, s51")
            A(f"s_cbranch_scc1 L_free{k}")
            A(f"s_mov_b32 s52, {spin}")
            lab(f"L_wfree{k}")
            A("ds_read_b32 v12, v13 offset:4")
            A("s_sub_u32 s52, s52, 1")
            A(f"s_cbranch_scc1 L_free{k}")
            A("s_waitcnt lgkmcnt(0)")
            A("v_readfirstlane_b32 s50, v12")
            A("s_cmp_ge_u32 s50, s51")
            A(f"s_cbranch_scc0 L_wfree{k}")
            lab(f"L_free{k}")
        for i in range(UL):
            pi, kk = divmod(i, piece)
            if i % grp == 0:
                A(f"s_add_u32 s45, s44, {pi*pstride + kk*1024}")
                A(f"s_add_u32 m0, s42, {i*1024}")
            g_idx = None if u_static is None else u_static * UL + i
            if g_idx is None or g_idx >= depth:
                A(f"s_waitcnt vmcnt({depth-1})")
            elif i % grp == 0:
                nop(1)
            if g_idx is not None:
                marks = {depth: 1, depth + 15: 2, depth + 31: 3, depth + 63: 4, depth + 95: 5, 127: 6}
                if g_idx in marks: stamp(marks[g_idx])
            va = f"v{2+(i&3)}" if which == 0 else "v6"
            off = (i % grp) * 1024
            A(f"buffer_load_dwordx4 {va}, {srd}, s45 offen offset:{off} {flags} lds")
            if i == pubpos and (u_static is None or u_static >= publag):
                A("s_add_u32 s43, s43, 1")
                A("v_max_i32 v11, s43, v9" if not peel else "v_mov_b32 v11, s43")
                A("ds_write_b32 v10, v11")
            if i == rapos and (u_static is None or u_static + 1 >= ring):
                A(f"s_add_u32 s50, s42, {UNIT}")
                A(f"s_and_b32 s50, s50, {RING-1}")
                A(f"s_lshr_b32 s50, s50, {US-2}")
                A("v_add_u32 v13, s50, v10")
                A("s_lshl_b32 s51, s41, 1")
                A(f"s_add_u32 s51, s51, {which+1}")
                A(f"s_lshr_b32 s51, s51, {ring.bit_length()-1}")
                A(f"s_lshl_b32 s51, s51, {CW.bit_length()-1}")
                A("ds_read_b32 v12, v13 offset:4")
                if which == 1:
                    A("s_lshl_b32 s50, s41, 2")
                    A("v_add_u32 v16, s50, v10")
                    A(f"ds_read_b32 v17, v16 offset:{MBOX-FL+4}")
            if u_static is not None and g_idx == bar_at - 1:
                A("s_barrier")
        A(f"s_add_u32 s42, s42, {UNIT}")
        A(f"s_and_b32 s42, s42, {RING-1}")
    npeel = ring // 2
    assert bar_at <= depth
    addr()
    A("s_waitcnt lgkmcnt(0)")
    A(f"s_mov_b32 s20, s{sK}"); A(f"s_mov_b32 s21, s{sK+1}")
    A(f"s_mov_b32 s24, s{sV}"); A(f"s_mov_b32 s25, s{sV+1}")
    A(f"s_load_dword s{sTAG}, {WS}, {EPO}")
    if bar_at == 0: A("s_barrier")
    if peel:
        for n in range(npeel):
            if n: addr()
            unit(0, 2*n)
            unit(1, 2*n+1)
            A("s_add_u32 s41, s41, 1")
    else:
        assert bar_at == 0
        A("s_branch L_first")
    lab("L_ld")
    if stamps:
        for bi, si in ((1, 1), (2, 2), (3, 3), (4, 4)):
            if peel: break
            A(f"s_cmp_lg_u32 s41, {bi*16//UL}")
            A(f"s_cbranch_scc1 L_nosta{si}")
            stamp(si)
            lab(f"L_nosta{si}")
        A(f"s_cmp_lg_u32 s41, {5*16//UL}")
        A("s_cbranch_scc1 L_nost7")
        stamp(7)
        lab("L_nost7")
        A(f"s_cmp_lg_u32 s41, {NBW//2}")
        A("s_cbranch_scc1 L_nost9")
        stamp(9)
        lab("L_nost9")
    A("s_waitcnt lgkmcnt(0)")
    A("v_readfirstlane_b32 s46, v17")
    A("s_cmp_lg_u32 s46, 0")
    A("s_cbranch_scc1 L_got")
    A(f"s_mov_b32 s52, {spin}")
    lab("L_wmb")
    A(f"ds_read_b32 v17, v16 offset:{MBOX-FL+4}")
    A("s_sub_u32 s52, s52, 1")
    A("s_cbranch_scc1 L_drain")
    A("s_waitcnt lgkmcnt(0)")
    A("v_readfirstlane_b32 s46, v17")
    A("s_cmp_lg_u32 s46, 0")
    A("s_cbranch_scc0 L_wmb")
    lab("L_got")
    A(f"s_cmp_gt_u32 s46, {NB}")
    A("s_cbranch_scc1 L_drain")
    A("s_sub_u32 s46, s46, 1")
    addr(False)
    lab("L_first")
    unit(0)
    unit(1)
    A("s_add_u32 s41, s41, 1")
    A("s_branch L_ld")
    lab("L_drain")
    C("units not yet published; the upper half of the word announces the total (+1)")
    if stamps: A("s_mov_b32 s80, s41")
    A("s_lshl_b32 s50, s41, 17")
    A("s_add_u32 s43, s43, s50")
    A("s_add_u32 s43, s43, 0x10000")
    A("s_mov_b32 s48, 0")
    vec_coords("s48")
    r1_addr(28)
    for j in range(publag - 1, -1, -1):
        A(f"s_waitcnt vmcnt({UL*j})")
        A("s_add_u32 s43, s43, 1")
        A("v_mov_b32 v11, s43")
        A("ds_write_b32 v10, v11")
    stamp(8)
    lab("L_publish")
    C("---- waves 4 and 5 merge the four partial results and publish them (normalised rows + log-sum-exp)")
    if t2:
        r2_addr(34)
        A("v_mov_b32 v36, 0"); A("v_mov_b32 v37, 1"); A("v_mov_b32 v38, 1"); A("v_mov_b32 v39, 0")
        if t2 == 3:
            A("s_mov_b32 exec_lo, 0x01010101")
            A("s_mov_b32 exec_hi, 0x01010101")
            A(f"global_load_dword v35, v34, {WS}")
            A("s_mov_b64 exec, -1")
    A(f"v_add_u32 v25, {WST}, v25")
    A("v_lshlrev_b32 v27, 3, v26")
    A(f"v_add_u32 v27, {WST+8192}, v27")
    A("v_mov_b32 v29, 0xffffff00")
    A("s_mov_b32 s56, 0x07060501")
    A("s_mov_b32 s57, 0x07060502")
    A("s_mov_b32 s58, 0x07060503")
    A("s_waitcnt lgkmcnt(0)")
    A(f"s_add_u32 s{sTAG}, s{sTAG}, 1")
    A(f"s_and_b32 s{sT8}, s{sTAG}, 0xff")
    A("s_barrier")
    for w in range(4): A(f"ds_read_b64 v[{44+2*w}:{45+2*w}], v27 offset:{w*32}")
    for w in range(4): A(f"ds_read_b128 v[{60+4*w}:{63+4*w}], v25 offset:{w*2048}")
    A("s_waitcnt lgkmcnt(4)")
    A("v_max3_f32 v30, v44, v46, v48")
    A("v_max_f32 v30, v30, v50")
    for w in range(4): A(f"v_sub_f32 v{52+2*w}, v{44+2*w}, v30")
    for w in range(4): A(f"v_exp_f32 v{52+2*w}, v{52+2*w}")
    A("s_waitcnt lgkmcnt(0)")
    A("v_mul_f32 v31, v45, v52")
    A("v_pk_mul_f32 v[76:77], v[60:61], v[52:53] op_sel_hi:[1,0]")
    A("v_fmac_f32 v31, v47, v54")
    A("v_pk_mul_f32 v[78:79], v[62:63], v[52:53] op_sel_hi:[1,0]")
    A("v_fmac_f32 v31, v49, v56")
    A("v_pk_fma_f32 v[76:77], v[64:65], v[54:55], v[76:77] op_sel_hi:[1,0,1]")
    A("v_fmac_f32 v31, v51, v58")
    A("v_pk_fma_f32 v[78:79], v[66:67], v[54:55], v[78:79] op_sel_hi:[1,0,1]")
    A("v_rcp_f32 v32, v31")
    A("v_log_f32 v31, v31")
    A("v_pk_fma_f32 v[76:77], v[68:69], v[56:57], v[76:77] op_sel_hi:[1,0,1]")
    A("v_pk_fma_f32 v[78:79], v[70:71], v[56:57], v[78:79] op_sel_hi:[1,0,1]")
    A("v_pk_fma_f32 v[76:77], v[72:73], v[58:59], v[76:77] op_sel_hi:[1,0,1]")
    A("v_pk_fma_f32 v[78:79], v[74:75], v[58:59], v[78:79] op_sel_hi:[1,0,1]")
    A("v_add_f32 v30, v30, v31")
    A("v_pk_mul_f32 v[78:79], v[78:79], v[32:33] op_sel_hi:[1,0]")
    A("v_pk_mul_f32 v[76:77], v[76:77], v[32:33] op_sel_hi:[1,0]")
    A(f"v_and_or_b32 v83, v30, v29, s{sT8}")
    A("v_perm_b32 v82, v78, v79, s58")
    A("v_perm_b32 v80, v76, v79, s56")
    A("v_perm_b32 v81, v77, v79, s57")
    A(f"global_store_dwordx4 v28, v[80:83], {WS} {stf}")
    stamp(11)
    if t2 == 1:
        A(f"global_store_dwordx4 v34, v[36:39], {WS} {stf}")
    if t2 == 2:
        A("s_mov_b32 exec_lo, 0x01010101")
        A("s_mov_b32 exec_hi, 0x01010101")
        A(f"global_load_dword v35, v34, {WS}")
        A("s_mov_b64 exec, -1")
    if h1ack:
        if h1ack == 1: A(f"s_waitcnt vmcnt({1 if t2 in (1, 2) else 0})")
        A("s_barrier")
    if stamps: dump_stamps()
    A("s_waitcnt vmcnt(0)")
    A("s_endpgm")

    lab("L_claimer")
    SS = S if dyn else NBW + 1
    C("clear the LDS flags; block list: the first steps are fixed, later ones are claimed")
    A("v_lshlrev_b32 v10, 3, v0")
    A(f"v_add_u32 v10, {FL}, v10")
    A("v_mov_b32 v14, 0")
    A("v_mov_b32 v15, 0")
    A("ds_write_b64 v10, v[14:15]")
    for j in range(4):
        A(f"v_lshl_add_u32 v9, v0, 2, {j}")
        A(f"v_lshl_add_u32 v{16+j}, v9, 3, s{sSPL}")
        A(f"v_add_u32 v{16+j}, 1, v{16+j}")
        A(f"v_cmp_gt_u32 vcc, {SS}, v9")
        nop(2)
        A(f"v_cndmask_b32 v{16+j}, v14, v{16+j}, vcc")
    A("v_lshlrev_b32 v10, 4, v0")
    A(f"v_add_u32 v10, {MBOX}, v10")
    A("ds_write_b128 v10, v[16:19]")
    A("s_waitcnt lgkmcnt(0)")
    A("s_barrier")
    A(f"s_load_dword s{sTAG}, {WS}, {EPO}")
    A("s_mov_b32 s48, 2")
    vec_coords("s48")
    r1_addr(28)
    if pw1 or pw2:
        C("bring this workgroup's hand-off lines on chip ahead of time (written with the previous tag), staggered")
        r2_addr(34)
        A("v_subrev_u32 v35, 0x8000, v28")
        A("v_subrev_u32 v36, 0x10000, v34")
        A(f"v_mov_b32 v4, {FL}")
        A(f"s_and_b32 s43, s{sPAIR}, 15")
        A(f"s_mul_i32 s43, s43, {pwat * 16 // UL}")
        A(f"s_add_u32 s43, s43, {10 * 16 // UL}")
        A(f"s_mov_b32 s44, {spin}")
        lab("L_pwd")
        A("ds_read_b32 v6, v4")
        A("s_sub_u32 s44, s44, 1")
        A("s_cbranch_scc1 L_pwd_x")
        A("s_waitcnt lgkmcnt(0)")
        A("v_readfirstlane_b32 s45, v6")
        A("s_cmp_ge_u32 s45, s43")
        A("s_cbranch_scc0 L_pwd")
        lab("L_pwd_x")
        A("s_waitcnt lgkmcnt(0)")
        for r in range(4): A(f"v_mov_b32 v{40+r}, s{sTAG}")
        if prd:
            A("s_mov_b32 exec_lo, 0x01010101")
            A("s_mov_b32 exec_hi, 0x01010101")
            if pw1:
                A(f"global_load_dword v40, v28, {WS}")
                A(f"global_load_dword v41, v35, {WS}")
            if pw2:
                A(f"global_load_dword v42, v34, {WS}")
                A(f"global_load_dword v43, v36, {WS}")
            A("s_mov_b64 exec, -1")
        else:
          if pw1:
            A(f"global_store_dwordx4 v28, v[40:43], {WS} {stf}")
            A(f"global_store_dwordx4 v35, v[40:43], {WS} {stf}")
          if pw2:
            A(f"global_store_dwordx4 v34, v[40:43], {WS} {stf}")
            A(f"global_store_dwordx4 v36, v[40:43], {WS} {stf}")
        A("s_waitcnt vmcnt(0)")
    if dyn:
        A(f"s_lshl_b32 s42, s{sPAIR}, {cts}")
        A(f"s_add_u32 s42, s42, {CTOFF}")
        A("v_mov_b32 v2, s42")
        A(f"s_add_u32 s28, s{sWS}, s42")
        A(f"s_addc_u32 s29, s{sWS+1}, 0")
        A("v_mov_b32 v3, 1")
        A("s_mov_b64 s[30:31], 0")
        A(f"s_lshl_b32 s38, s{sSPL}, 3")
        A("s_sub_u32 s39, 64, s38")
        A(f"v_mov_b32 v4, {FL}")
        A(f"v_mov_b32 v5, {MBOX + 4*S}")
        A(f"s_mov_b32 s43, {2*S - cah}")
        A("s_mov_b64 exec, 1")
        A(f"s_mov_b32 s44, {spin}")
        lab("L_cl")
        A("ds_read_b32 v6, v4")
        A("s_sub_u32 s44, s44, 1")
        A("s_cbranch_scc1 L_cl_x")
        A("s_waitcnt lgkmcnt(0)")
        A("v_readfirstlane_b32 s45, v6")
        A("s_and_b32 s45, s45, 0xffff")
        A("s_cmp_ge_u32 s45, s43")
        A("s_cbranch_scc0 L_cl")
        if satom == 2:
            LIM = NBW - S
            C("eight 8-bit counters in one word, one per column of blocks: take from the own column first, then from the fullest")
            lab("L_pick")
            A("s_lshr_b64 s[46:47], s[30:31], s38")
            A("s_lshl_b64 s[48:49], s[30:31], s39")
            A("s_cmp_eq_u32 s38, 0")
            A("s_cselect_b64 s[48:49], 0, s[48:49]")
            A("s_or_b64 s[46:47], s[46:47], s[48:49]")
            A("s_and_b32 s45, s46, 0xff")
            A("s_mov_b32 s50, 0")
            A(f"s_cmp_lt_u32 s45, {LIM}")
            A("s_cbranch_scc1 L_take")
            A(f"s_mov_b32 s50, {LIM << 3}")
            for j in range(1, 8):
                A(f"s_bfe_u32 s45, s{46 + j // 4}, {0x80000 + 8 * (j % 4):#x}")
                A(f"s_lshl3_add_u32 s45, s45, {j}")
                A("s_min_u32 s50, s50, s45")
            A(f"s_mov_b32 s45, {NB + 1}")
            A(f"s_cmp_ge_u32 s50, {LIM << 3}")
            A("s_cbranch_scc1 L_post")
            lab("L_take")
            A(f"s_add_u32 s50, s50, s{sSPL}")
            A("s_and_b32 s50, s50, 7")
            A("s_lshl_b32 s51, s50, 3")
            A("s_lshl_b64 s[46:47], 1, s51")
            A("s_mov_b64 s[30:31], s[46:47]")
            A("s_atomic_add_x2 s[46:47], s[28:29], 0x0 glc")
            A("s_waitcnt lgkmcnt(0)")
            A("s_add_u32 s30, s30, s46")
            A("s_addc_u32 s31, s31, s47")
            A("s_lshr_b64 s[46:47], s[46:47], s51")
            A("s_and_b32 s45, s46, 0xff")
            A(f"s_cmp_ge_u32 s45, {LIM}")
            A("s_cbranch_scc1 L_pick")
            A("s_lshl3_add_u32 s45, s45, s50")
            A(f"s_add_u32 s45, s45, {8*S + 1}")
            lab("L_post")
            A("s_add_u32 s43, s43, 2")
            A("v_mov_b32 v7, s45")
            A("ds_write_b32 v5, v7")
            A("v_add_u32 v5, 4, v5")
        elif satom:
            A("s_mov_b32 s45, 1")
            A("s_atomic_add s45, s[28:29], 0x0 glc")
            A("s_add_u32 s43, s43, 2")
            A("s_waitcnt lgkmcnt(0)")
            A(f"s_add_u32 s45, s45, {8*S + 1}")
            A("v_mov_b32 v7, s45")
            A("ds_write_b32 v5, v7")
            A("v_add_u32 v5, 4, v5")
        else:
            A(f"global_atomic_add v7, v2, v3, {WS} sc0 sc1")
            A("s_add_u32 s43, s43, 2")
            A("s_waitcnt vmcnt(0)")
            A(f"v_add_u32 v7, {8*S + 1}, v7")
            A("ds_write_b32 v5, v7")
            A("v_readfirstlane_b32 s45, v7")
            A("v_add_u32 v5, 4, v5")
        A(f"s_cmp_gt_u32 s45, {NB}")
        A("s_cbranch_scc0 L_cl")
        lab("L_cl_x")
        A("s_mov_b64 exec, -1")
    A("s_branch L_publish")
    lab("L_end")
    A("s_endpgm")

    src = HEAD + f"; @launch grid=(256,1,1) block=(384,1,1) lds={LDS}\n"
    src += f""".amdgcn_target "amdgcn-amd-amdhsa--gfx950"
.text
.globl {KN}
.p2align 8
.type {KN},@function
{KN}:
""" + "\n".join(L) + f"""
.section .rodata,"a"
.p2align 6
.amdhsa_kernel {KN}
  .amdhsa_next_free_vgpr 176
  .amdhsa_next_free_sgpr 96
  .amdhsa_accum_offset 176
  .amdhsa_group_segment_fixed_size 0
  .amdhsa_kernarg_size 64
  .amdhsa_user_sgpr_count 2
  .amdhsa_user_sgpr_kernarg_segment_ptr 1
  .amdhsa_system_sgpr_workgroup_id_x 1
  .amdhsa_float_denorm_mode_32 3
.end_amdhsa_kernel
"""
    return src

if __name__ == "__main__":
    kw = eval("dict(" + (sys.argv[2] if len(sys.argv) > 2 else "") + ")")
    open(sys.argv[1], "w").write(gen(**kw))
```

```python
import math, sys, struct

KN = "standalone__gqa_block_cached__decode_kernel"
HEAD = """; Kernarg layout for this problem (64 bytes, ptrs only, base s[0:1]):
"""

def f2u(x):
    return struct.unpack("<I", struct.pack("<f", x))[0]

def gen(depth=24, UL=8, piece=4, pstride=32768, rrot=4, grot=1, flags="nt", wflags="nt",
        stamps=False, spin=1 << 17, prio=3, probe=None, psleep=0, qdelay=3, S=57, cah=5, bar_at=0,
        pw2=0, outf='', sync_at=0, pdelay=0, wodelay=0, peel=0, pw1=1, pwat=2, diag=0, h1ack=1, h2ack=1, pdelay2=0, woend=2, satom=2, cts=10, stlbl='L_h1poll', prd=1, t2=2, qk=2, wqflags='nt', omap=1, apoll=0):
    dyn = S is not None
    if probe is not None: stamps = True
    L = []
    def A(s): L.append("    " + s)
    def lab(s): L.append(s + ":")
    def nop(n): A(f"s_nop {n-1}")
    def C(s): L.append("    ; " + s)
    ldf = stf = "sc1"

    UNIT = UL * 1024
    US = UNIT.bit_length() - 1
    CW = UL // 4
    RING = 128 * 1024
    ring = RING // UNIT
    NB = 4096 // UL
    NBW = NB // 8
    WST = RING
    FL = RING + 16384
    QCNT = FL + 128
    PWF = FL + 132
    MARK = 0x5a
    QB = FL + 512
    MBOX = QB + 1024
    LDS = MBOX + 1024
    EPO = 0
    CTOFF = 32768
    QOFF = 64 << 10
    R1OFF = 1 << 20
    R2OFF = 3 << 19
    STOFF = 4 << 20
    cs = (128 ** -0.5) * math.log2(math.e)

    npiece = UL // piece
    span = npiece * pstride
    R = (4 << 20) // span
    G = pstride // (piece * 1024)
    assert R * G == NB and R >= 1
    if dyn:
        assert 2 * S - cah > ring + 2 and S + NB - 8 * S < 256
    else:
        assert NBW < 255

    sX, sK, sV, sWQ, sWO, sOUT, sDBG, sWS = 4, 6, 8, 10, 12, 14, 16, 18
    WS = f"s[{sWS}:{sWS+1}]"
    sPAIR, sSPL, sB, sHKV = 32, 33, 34, 35
    sTAG, sCS, sT8 = 36, 37, 53
    sHEAD, sHALF = 40, 42
    def stamp(idx):
        if stamps:
            A(f"s_memrealtime s[{60+2*idx}:{61+2*idx}]")
    def dump_stamps():
        A("s_getreg_b32 s59, hwreg(HW_REG_XCC_ID)")
        A("s_waitcnt lgkmcnt(0)")
        A("s_mul_i32 s41, s2, 6")
        A("s_add_u32 s41, s41, s3")
        A("s_lshl_b32 s41, s41, 6")
        A(f"s_add_u32 s41, s41, {STOFF}")
        A("s_mov_b64 exec, 1")
        A("v_mov_b32 v24, s41")
        for i in range(12):
            A(f"v_mov_b32 v25, s{60+2*i}")
            A(f"global_store_dword v24, v25, {WS} offset:{4*i}")
        A("v_mov_b32 v25, s59")
        A(f"global_store_dword v24, v25, {WS} offset:60")

    def probe_code(sfx):
        pw, ia, ib, K, pwg = probe
        A("s_waitcnt vmcnt(0) lgkmcnt(0)")
        A(f"s_cmp_lg_u32 s3, {pw}")
        A("s_cbranch_scc1 L_end")
        if pwg >= 0:
            A(f"s_cmp_lg_u32 s2, {pwg}")
            A("s_cbranch_scc1 L_end")
        A(f"s_sub_u32 s90, s{60+2*ia}, s{60+2*ib}")
        A(f"s_mul_i32 s90, s90, {K}")
        A("s_min_u32 s90, s90, 100000")
        A("s_add_u32 s90, s90, s60")
        A("s_add_u32 s90, s90, 6000")
        lab("L_probe" + sfx)
        A("s_memrealtime s[92:93]")
        A("s_waitcnt lgkmcnt(0)")
        A("s_sub_u32 s92, s92, s90")
        A("s_cmp_lt_i32 s92, 0")
        A(f"s_cbranch_scc1 L_probe{sfx}")
        A("s_endpgm")

    def vec_coords(iw):
        A("v_bfe_u32 v24, v0, 3, 2")
        A("v_bfe_u32 v25, v0, 2, 1")
        A("v_lshrrev_b32 v26, 5, v0")
        A(f"v_add_u32 v26, {iw}, v26")
        A("v_lshlrev_b32 v25, 10, v25")
        A("v_lshl_add_u32 v25, v24, 8, v25")
        A("v_lshl_add_u32 v25, v26, 6, v25")
        A("v_and_b32 v27, 3, v0")
        A("v_lshl_add_u32 v25, v27, 4, v25")
        A("v_and_b32 v27, 7, v0")
        A("v_lshlrev_b32 v27, 4, v27")
    def r1_addr(dst):
        A(f"v_lshl_add_u32 v{dst}, v26, 14, v27")
        A(f"v_lshl_add_u32 v{dst}, v24, 12, v{dst}")
        A(f"s_lshl_b32 s54, s{sB}, 3")
        A(f"s_add_u32 s54, s54, s{sSPL}")
        A(f"s_lshl_b32 s41, s{sHKV}, 16")
        A("s_lshl_b32 s45, s54, 7")
        A("s_add_u32 s41, s41, s45")
        A(f"s_add_u32 s41, s41, {R1OFF}")
        A(f"v_add_u32 v{dst}, s41, v{dst}")
    def r2_addr(dst):
        A(f"v_lshl_add_u32 v{dst}, v26, 15, v27")
        A(f"v_lshl_add_u32 v{dst}, v24, 13, v{dst}")
        A(f"s_lshl_b32 s41, s{sB}, 10")
        A("s_and_b32 s45, s2, 63")
        A("s_add_u32 s41, s41, s45")
        A("s_lshl_b32 s41, s41, 7")
        A(f"s_add_u32 s41, s41, {R2OFF}")
        A(f"v_add_u32 v{dst}, s41, v{dst}")

    C("workgroups past the 256 that carry work leave at once")
    A("s_cmp_ge_u32 s2, 256")
    A("s_cbranch_scc1 L_end")
    A("s_load_dwordx16 s[4:19], s[0:1], 0")
    stamp(0)
    A("v_lshrrev_b32 v1, 6, v0")
    A("v_and_b32 v0, 63, v0")
    A(f"s_lshr_b32 s{sPAIR}, s2, 3")
    A("v_readfirstlane_b32 s3, v1")
    A(f"s_and_b32 s{sSPL}, s2, 7")
    A(f"s_lshr_b32 s{sB}, s2, 6")
    A(f"s_and_b32 s{sHKV}, s{sPAIR}, 7")
    A("s_cmp_eq_u32 s3, 4")
    A("s_cbranch_scc1 L_loader")
    A("s_cmp_eq_u32 s3, 5")
    A("s_cbranch_scc1 L_claimer")

    A("v_lshrrev_b32 v7, 4, v0")
    A("v_and_b32 v21, 15, v0")
    A("v_and_b32 v22, 3, v0")
    A("v_bfe_u32 v23, v0, 2, 2")
    A("s_cmp_lg_u32 s3, 0")
    A("s_cbranch_scc1 L_noq")
    C("---- wave 0: partial q = x[:, 128b:128b+128] @ wq[128b:128b+128, 64 columns] for all four batches")
    A("s_mov_b32 s30, 0x400000"); A("s_mov_b32 s31, 0x20000")
    if qk == 4:
        A(f"s_lshl_b32 s41, s{sB}, 20")
        A(f"s_lshl_b32 s42, s{sHKV}, 10")
        A("s_add_u32 s41, s41, s42")
        A(f"s_lshl_b32 s42, s{sSPL}, 7")
        A("s_add_u32 s41, s41, s42")
        A("v_lshrrev_b32 v24, 3, v0")
        A("v_lshlrev_b32 v24, 13, v24")
        A("v_and_b32 v25, 7, v0")
        A("v_lshl_add_u32 v24, v25, 4, v24")
        A("v_lshlrev_b32 v25, 10, v22")
        A("v_lshl_add_u32 v25, v7, 4, v25")
        A(f"s_lshl_b32 s42, s{sB}, 8")
        A("v_add_u32 v25, s42, v25")
        A(f"s_mov_b32 m0, {WST}")
        A("s_waitcnt lgkmcnt(0)")
        A(f"s_mov_b32 s28, s{sWQ}"); A(f"s_mov_b32 s29, s{sWQ+1}")
        for i in range(16):
            if i:
                A(f"s_mov_b32 m0, {WST + i*1024}")
                A(f"s_add_u32 s41, s41, {8*8192}")
            if not diag & 2: A(f"buffer_load_dwordx4 v24, s[28:31], s41 offen {wflags} lds")
            if i == 3:
                for u in range(4):
                    A(f"global_load_dwordx4 v[{44+4*u}:{47+4*u}], v25, s[{sX}:{sX+1}] offset:{u*64}")
    else:
        A(f"s_lshr_b32 s41, s{sB}, 1")
        A("s_lshl_b32 s43, s41, 9")
        A("s_lshl_b32 s41, s41, 21")
        A(f"s_lshl_b32 s42, s{sHKV}, 10")
        A("s_add_u32 s41, s41, s42")
        A(f"s_lshl_b32 s42, s{sSPL}, 7")
        A("s_add_u32 s41, s41, s42")
        A(f"s_and_b32 s42, s{sB}, 1")
        A("s_lshl_b32 s42, s42, 6")
        A("s_add_u32 s41, s41, s42")
        A("v_lshrrev_b32 v24, 2, v0")
        A("v_lshlrev_b32 v24, 13, v24")
        A("v_lshl_add_u32 v24, v22, 4, v24")
        A("v_lshlrev_b32 v25, 10, v22")
        A("v_lshl_add_u32 v25, v23, 6, v25")
        A("v_lshl_add_u32 v25, v7, 4, v25")
        A("v_add_u32 v25, s43, v25")
        A(f"s_mov_b32 m0, {WST}")
        A("s_waitcnt lgkmcnt(0)")
        A(f"s_mov_b32 s28, s{sWQ}"); A(f"s_mov_b32 s29, s{sWQ+1}")
        for i in range(16):
            if i:
                A(f"s_mov_b32 m0, {WST + i*1024}")
                A(f"s_add_u32 s41, s41, {16*8192}")
            A(f"buffer_load_dwordx4 v24, s[28:31], s41 offen {wqflags} lds")
            if i == 3:
                for u in range(2):
                    A(f"global_load_dwordx4 v[{44+4*u}:{47+4*u}], v25, s[{sX}:{sX+1}] offset:{u*256}")
    A("s_branch L_st")
    lab("L_noq")
    A("s_cmp_lg_u32 s3, 1")
    A("s_cbranch_scc1 L_st")
    if dyn:
        C("---- wave 1 of the workgroup with split 0 clears its pair's work counter before its q part is published")
        A(f"s_cmp_lg_u32 s{sSPL}, 0")
        A("s_cbranch_scc1 L_st")
        A(f"s_lshl_b32 s42, s{sPAIR}, {cts}")
        A(f"s_add_u32 s42, s42, {CTOFF}")
        A("v_lshl_add_u32 v26, v0, 2, s42")
        A("v_mov_b32 v80, 0")
        A("s_waitcnt lgkmcnt(0)")
        A("s_mov_b32 exec_hi, 0")
        A(f"global_store_dword v26, v80, {WS} sc1")
        A("s_mov_b64 exec, -1")
    lab("L_st")
    A("s_waitcnt lgkmcnt(0)")
    A(f"s_load_dword s{sTAG}, {WS}, {EPO}")
    stamp(9)
    A("s_barrier")
    C("K fragment addresses: key*256 + ((t ^ (key>>2))*64) + ((g ^ (key&3))*16) + 4096*(wave's slice)")
    A(f"s_and_b32 s43, s3, {CW-1}")
    A("s_lshl_b32 s43, s43, 12")
    A("v_xor_b32 v24, v7, v22")
    A("v_lshlrev_b32 v24, 4, v24")
    A("v_lshl_add_u32 v24, v21, 8, v24")
    A("v_add_u32 v24, s43, v24")
    for t in range(4):
        A(f"v_xor_b32 v25, {t}, v23")
        A(f"v_lshl_add_u32 v{2+t}, v25, 6, v24")
    C("V fragment address: g*1024 + (l&15)*16 + 4096*(wave's slice)")
    A("v_lshlrev_b32 v6, 10, v7")
    A("v_lshl_add_u32 v6, v21, 4, v6")
    A("v_add_u32 v6, s43, v6")
    C("selector masks")
    A("v_mov_b32 v24, 0xffff")
    A("v_mov_b32 v25, 0xffff0000")
    A("v_mov_b32 v13, 0")
    A("v_mov_b32 v14, 0")
    A("v_cmp_eq_u32 vcc, 0, v22"); nop(2); A("v_cndmask_b32 v13, v13, v24, vcc")
    A("v_cmp_eq_u32 vcc, 1, v22"); nop(2); A("v_cndmask_b32 v13, v13, v25, vcc")
    A("v_cmp_eq_u32 vcc, 2, v22"); nop(2); A("v_cndmask_b32 v14, v14, v24, vcc")
    A("v_cmp_eq_u32 vcc, 3, v22"); nop(2); A("v_cndmask_b32 v14, v14, v25, vcc")
    A("v_mov_b32 v15, 0xff800000")
    A("v_mov_b32 v16, 0xff800000")
    A("v_mov_b32 v17, 0")
    A("v_mov_b32 v18, 1")
    A(f"v_mov_b32 v19, {FL}")
    for r in range(88, 96): A(f"v_mov_b32 v{r}, 0")
    A(f"s_mov_b32 s{sCS}, {f2u(cs):#x}")
    A("s_waitcnt lgkmcnt(0)")
    A(f"s_add_u32 s{sTAG}, s{sTAG}, 1")
    A(f"s_and_b32 s{sT8}, s{sTAG}, 0xff")
    A("s_cmp_eq_u32 s3, 0")
    A("s_cbranch_scc1 L_qprod")
    A("s_cmp_lg_u32 s3, 1")
    A("s_cbranch_scc1 L_qgather")
    A("s_waitcnt vmcnt(0)")
    A(f"ds_write_b32 v19, v18 offset:{PWF-FL}")
    A("s_branch L_qgather")
    lab("L_qprod")
    if qk == 4:
        A("v_lshl_add_u32 v24, v7, 3, v23")
        A("v_lshlrev_b32 v24, 7, v24")
        A("v_lshl_add_u32 v24, v22, 3, v24")
        A(f"v_add_u32 v24, {WST}, v24")
        for t in range(4):
            A(f"s_waitcnt vmcnt({12 - 4*t})")
            for ct in range(4):
                r = 112 + 16*t + 4*ct
                A(f"ds_read_b64_tr_b16 v[{r}:{r+1}], v24 offset:{t*4096 + ct*32}")
                A(f"ds_read_b64_tr_b16 v[{r+2}:{r+3}], v24 offset:{t*4096 + ct*32 + 512}")
            if t:
                A("s_waitcnt lgkmcnt(8)")
                u = t - 1
                for ct in range(4):
                    r = 112 + 16*u + 4*ct
                    cin = "0" if u == 0 else f"v[{60+4*ct}:{63+4*ct}]"
                    A(f"v_mfma_f32_16x16x32_bf16 v[{60+4*ct}:{63+4*ct}], v[{r}:{r+3}], v[{44+4*u}:{47+4*u}], {cin}")
        stamp(10)
        A("s_waitcnt lgkmcnt(0)")
        for ct in range(4):
            r = 112 + 48 + 4*ct
            A(f"v_mfma_f32_16x16x32_bf16 v[{60+4*ct}:{63+4*ct}], v[{r}:{r+3}], v[56:59], v[{60+4*ct}:{63+4*ct}]")
        A("v_lshlrev_b32 v25, 16, v22")
        A("v_lshl_add_u32 v25, v23, 6, v25")
        A("v_lshl_add_u32 v25, v7, 4, v25")
        A(f"s_lshl_b32 s41, s{sHKV}, 13")
        A(f"s_lshl_b32 s42, s{sB}, 11")
        A("s_add_u32 s41, s41, s42")
        A(f"s_lshl_b32 s42, s{sSPL}, 8")
        A("s_add_u32 s41, s41, s42")
        A(f"s_add_u32 s41, s41, {QOFF}")
        A("v_add_u32 v25, s41, v25")
        A("v_mov_b32 v27, 0xffffff00")
        for ct in range(1, 4):
            for r in range(4):
                A(f"v_mov_b32_dpp v{60+r}, v{60+4*ct+r} quad_perm:[0,1,2,3] row_mask:0xf bank_mask:{1<<ct:#x}")
    else:
        A("v_lshl_add_u32 v24, v7, 3, v23")
        A("v_lshlrev_b32 v24, 6, v24")
        A("v_lshl_add_u32 v24, v22, 3, v24")
        A(f"v_add_u32 v24, {WST}, v24")
        def acc(ct, tq): return 64 + 16*ct + 4*tq
        def mf(pair):
            for t in (2*pair, 2*pair+1):
                for ct in range(2):
                    r = 112 + 8*t + 4*ct
                    d = acc(ct, t & 3)
                    cin = "0" if t < 4 else f"v[{d}:{d+3}]"
                    A(f"v_mfma_f32_16x16x32_bf16 v[{d}:{d+3}], v[{r}:{r+3}], v[{44+4*(t>>2)}:{47+4*(t>>2)}], {cin}")
        for pair in range(4):
            A(f"s_waitcnt vmcnt({12 - 4*pair})")
            for t in (2*pair, 2*pair+1):
                for ct in range(2):
                    r = 112 + 8*t + 4*ct
                    A(f"ds_read_b64_tr_b16 v[{r}:{r+1}], v24 offset:{t*2048 + ct*32}")
                    A(f"ds_read_b64_tr_b16 v[{r+2}:{r+3}], v24 offset:{t*2048 + ct*32 + 256}")
            if pair:
                A("s_waitcnt lgkmcnt(8)")
                mf(pair - 1)
        stamp(10)
        A("s_waitcnt lgkmcnt(0)")
        mf(3)
        A("v_lshlrev_b32 v25, 15, v22")
        A("v_lshl_add_u32 v25, v23, 6, v25")
        A("v_lshl_add_u32 v25, v7, 4, v25")
        A(f"s_lshl_b32 s41, s{sHKV}, 12")
        A(f"s_lshr_b32 s42, s{sB}, 1")
        A("s_lshl_b32 s42, s42, 11")
        A("s_add_u32 s41, s41, s42")
        A(f"s_lshl_b32 s42, s{sSPL}, 8")
        A("s_add_u32 s41, s41, s42")
        A(f"s_and_b32 s42, s{sB}, 1")
        A("s_lshl_b32 s42, s42, 7")
        A("s_add_u32 s41, s41, s42")
        A(f"s_add_u32 s41, s41, {QOFF}")
        A("v_add_u32 v25, s41, v25")
        A("v_mov_b32 v27, 0xffffff00")
        for (src, own, sh, bm) in ((acc(0,1), acc(0,0), "row_shl:4", 1), (acc(1,0), acc(1,1), "row_shr:4", 2),
                                   (acc(0,2), 60, "row_shl:8", 1), (acc(1,2), 60, "row_shl:4", 2),
                                   (acc(0,3), 60, "row_shl:12", 1), (acc(1,3), 60, "row_shl:8", 2)):
            for r in range(4):
                A(f"v_add_f32_dpp v{60+r}, v{src+r}, v{own+r} {sh} row_mask:0xf bank_mask:{bm:#x}")
        for r in range(88, 96): A(f"v_mov_b32 v{r}, 0")
    for r in range(4): A(f"v_and_or_b32 v{60+r}, v{60+r}, v27, s{sT8}")
    A(f"s_mov_b32 s44, {spin}")
    lab("L_pww")
    A(f"ds_read_b32 v20, v19 offset:{PWF-FL}")
    A("s_sub_u32 s44, s44, 1")
    A("s_cbranch_scc1 L_pww_x")
    A("s_waitcnt lgkmcnt(0)")
    A("v_readfirstlane_b32 s49, v20")
    A("s_cmp_lg_u32 s49, 0")
    A("s_cbranch_scc0 L_pww")
    lab("L_pww_x")
    if qk == 2:
        A("s_mov_b32 exec_lo, 0x00ff00ff")
        A("s_mov_b32 exec_hi, 0x00ff00ff")
    if not diag & 4: A(f"global_store_dwordx4 v25, v[60:63], {WS} {stf}")
    A("s_mov_b64 exec, -1")
    stamp(1)
    lab("L_qgather")
    C("---- consumer wave w sums the four partials of head w's q, rounds to bf16 and shares it through LDS")
    A("v_and_b32 v25, 31, v0")
    A("v_lshlrev_b32 v24, 4, v25")
    A("v_lshrrev_b32 v26, 5, v0")
    A(f"v_lshl_add_u32 v24, v26, {12 if qk == 4 else 11}, v24")
    A(f"s_lshl_b32 s41, s{sPAIR}, {13 if qk == 4 else 12}")
    A("s_lshl_b32 s42, s3, 9")
    A("s_add_u32 s41, s41, s42")
    A(f"s_add_u32 s41, s41, {QOFF}")
    A("v_add_u32 v148, s41, v24")
    A("s_lshl_b32 s42, s3, 8")
    A(f"s_add_u32 s42, s42, {QB}")
    A("v_lshl_add_u32 v149, v25, 3, s42")
    C("---- addresses of the final phase")
    vOSC, vMLW, vH1O, vS2W, vS2R, vR2P, vH2A, vH2B, vOUT, vMSK, vWO = range(112, 123)
    A(f"s_lshl_b32 s{sHEAD}, s{sHKV}, 2")
    A(f"s_lshr_b32 s45, s{sSPL}, 1")
    A(f"s_add_u32 s{sHEAD}, s{sHEAD}, s45")
    A(f"s_and_b32 s{sHALF}, s{sSPL}, 1")
    A("v_lshlrev_b32 v20, 4, v0")
    A("s_lshl_b32 s43, s3, 11")
    A(f"v_add_u32 v{vS2W}, s43, v20")
    A(f"v_add_u32 v{vOSC}, {WST}, v{vS2W}")
    A("s_lshl_b32 s43, s3, 5")
    A(f"s_add_u32 s43, s43, {WST+8192}")
    A(f"v_lshl_add_u32 v{vMLW}, v23, 3, s43")
    A("s_and_b32 s43, s3, 1")
    A("s_lshl_b32 s43, s43, 1")
    vec_coords("s43")
    A(f"v_mov_b32 v{vS2R}, v25")
    r2_addr(vR2P)
    A("v_lshl_add_u32 v24, v23, 3, v22")
    A("v_lshlrev_b32 v24, 7, v24")
    A("v_lshl_add_u32 v24, v7, 4, v24")
    A(f"s_lshl_b32 s41, s{sHEAD}, 2")
    A(f"s_lshl_b32 s45, s{sHALF}, 1")
    A("s_add_u32 s41, s41, s45")
    A("s_lshr_b32 s45, s3, 1")
    A("s_add_u32 s41, s41, s45")
    A("s_lshl_b32 s46, s41, 5")
    A("s_lshl_b32 s41, s41, 12")
    A("s_and_b32 s45, s3, 1")
    A("s_lshl_b32 s43, s45, 2")
    A("s_add_u32 s46, s46, s43")
    A("s_lshl_b32 s45, s45, 6")
    A("s_add_u32 s41, s41, s45")
    A(f"s_add_u32 s41, s41, {R1OFF}")
    A(f"v_add_u32 v{vH1O}, s41, v24")
    A("s_lshl_b32 s46, s46, 10")
    A(f"s_lshl_b32 s45, s{sB}, 8")
    A("s_add_u32 s46, s46, s45")
    A(f"v_lshlrev_b32 v{vWO}, 10, v7")
    A(f"v_lshl_add_u32 v{vWO}, v21, 4, v{vWO}")
    A(f"v_add_u32 v{vWO}, s46, v{vWO}")
    A("v_lshrrev_b32 v24, 1, v0")
    A("v_lshlrev_b32 v24, 7, v24")
    A("v_and_b32 v25, 1, v0")
    A("v_lshl_add_u32 v24, v25, 4, v24")
    if omap:
        A("s_and_b32 s41, s2, 31")
        A("s_lshl_b32 s41, s41, 1")
        A("s_bfe_u32 s45, s2, 0x10005")
        A("s_add_u32 s46, s41, s45")
    else:
        A("s_and_b32 s46, s2, 63")
    A("s_lshl_b32 s41, s46, 13")
    A(f"s_lshl_b32 s45, s{sB}, 5")
    A("s_add_u32 s41, s41, s45")
    A(f"s_add_u32 s41, s41, {R2OFF}")
    A(f"v_add_u32 v{vH2A}, s41, v24")
    A(f"v_add_u32 v{vH2B}, 0x1000, v{vH2A}")
    A("s_bfe_u32 s41, s46, 0x20002")
    A("s_lshl_b32 s41, s41, 10")
    A("s_bfe_u32 s45, s46, 0x20004")
    A("s_lshl_b32 s45, s45, 8")
    A("s_add_u32 s41, s41, s45")
    A("s_and_b32 s45, s46, 3")
    A("s_lshl_b32 s45, s45, 6")
    A("s_add_u32 s41, s41, s45")
    A(f"s_lshl_b32 s45, s{sB}, 2")
    A("s_add_u32 s41, s41, s45")
    A("v_and_b32 v24, 1, v7")
    A("v_lshlrev_b32 v24, 5, v24")
    A("v_lshrrev_b32 v25, 1, v7")
    A("v_lshl_add_u32 v24, v25, 4, v24")
    A(f"v_add_u32 v{vOUT}, s41, v24")
    A(f"v_mov_b32 v{vMSK}, 0xffffff00")
    A("v_mov_b32 v124, 0")
    A("v_mov_b32 v125, 0")
    A("s_mov_b32 s57, 0x0c04000c")
    A("s_mov_b32 s58, 0x04020100")
    A(f"s_mov_b32 s44, {spin}")
    def ready_wait(lbl, n):
        lab(lbl)
        A("ds_read_b32 v20, v19")
        A("s_sub_u32 s44, s44, 1")
        A(f"s_cbranch_scc1 {lbl}_x")
        A("s_waitcnt lgkmcnt(0)")
        A("v_readfirstlane_b32 s49, v20")
        A(f"s_cmp_ge_u32 s49, {n}")
        A(f"s_cbranch_scc0 {lbl}")
        lab(f"{lbl}_x")
    if qdelay: ready_wait("L_qdel", qdelay * 16 // UL)
    def poll(lbl, loads, tagged, atomic=False):
        import re as _re
        def check(again):
            A("s_waitcnt vmcnt(0)")
            t = 68
            if len(tagged) == 8:
                a = tagged
                for j in range(8): A(f"v_xor_b32 v{t+j}, s{sT8}, v{a[j]}")
                A(f"v_or3_b32 v{t}, v{t}, v{t+1}, v{t+2}")
                A(f"v_or3_b32 v{t+3}, v{t+3}, v{t+4}, v{t+5}")
                A(f"v_or3_b32 v{t}, v{t}, v{t+6}, v{t+7}")
                A(f"v_or_b32 v{t}, v{t}, v{t+3}")
            elif len(tagged) == 4:
                for j in range(4): A(f"v_xor_b32 v{t+j}, s{sT8}, v{tagged[j]}")
                A(f"v_or3_b32 v{t}, v{t}, v{t+1}, v{t+2}")
                A(f"v_or_b32 v{t}, v{t}, v{t+3}")
            else:
                A(f"v_xor_b32 v{t}, s{sT8}, v{tagged[0]}")
                A(f"v_xor_b32 v{t+1}, s{sT8}, v{tagged[1]}")
                A(f"v_or_b32 v{t}, v{t}, v{t+1}")
            A(f"v_and_b32 v{t}, 0xff, v{t}")
            A(f"v_cmp_ne_u32 vcc, 0, v{t}")
            if len(tagged) >= 4:
                A("s_and_b64 exec, exec, vcc")
            else:
                A("s_or_b32 s45, vcc_lo, vcc_hi")
                A("s_lshr_b32 s46, s45, 16")
                A("s_or_b32 s45, s45, s46")
                A("s_pack_ll_b32_b16 s46, s45, s45")
                A("s_mov_b32 s47, s46")
                A("s_and_b64 exec, exec, s[46:47]")
            A(again)
        if atomic:
            for ld in loads: A(ld)
            check(f"s_cbranch_scc0 {lbl}_x")
            lds2 = []
            for ld in loads:
                m = _re.match(r"global_load_dwordx4 v\[(\d+):\d+\], (v\d+), (s\[\d+:\d+\])(?: offset:(\d+))?", ld)
                r0, va, sb, off = int(m.group(1)), m.group(2), m.group(3), int(m.group(4) or 0)
                lds2.append(f"global_atomic_add_x2 v[{r0+2}:{r0+3}], {va}, v[124:125], {sb} offset:{off+8} sc0 sc1")
                lds2.append(f"global_atomic_add_x2 v[{r0}:{r0+1}], {va}, v[124:125], {sb} offset:{off} sc0 sc1")
            loads = lds2
        lab(lbl)
        if stamps and lbl == stlbl:
            A("s_mov_b32 s78, s82")
            stamp(11)
            A("s_waitcnt lgkmcnt(0)")
        for ld in loads: A(ld)
        A("s_sub_u32 s44, s44, 1")
        A(f"s_cbranch_scc1 {lbl}_x")
        check(f"s_cbranch_scc1 {lbl}")
        lab(f"{lbl}_x")
        A("s_mov_b64 exec, -1")
        A("s_waitcnt vmcnt(0)")
    if qk == 2: poll("L_qpoll", [f"global_load_dwordx4 v[44:47], v148, {WS} {ldf}"], list(range(44, 48)))
    elif not diag & 4: poll("L_qpoll", [f"global_load_dwordx4 v[44:47], v148, {WS} {ldf}",
                     f"global_load_dwordx4 v[48:51], v148, {WS} offset:2048 {ldf}"], list(range(44, 52)))
    if qk == 4:
        for r in range(4): A(f"v_add_f32 v{44+r}, v{44+r}, v{48+r}")
    for r in range(4): A(f"v_mov_b32 v{48+r}, v{44+r}")
    for r in range(4): A(f"v_permlane32_swap_b32 v{44+r}, v{48+r}")
    for r in range(4): A(f"v_add_f32 v{44+r}, v{44+r}, v{48+r}")
    A("v_cvt_pk_bf16_f32 v44, v44, v45")
    A("v_cvt_pk_bf16_f32 v45, v46, v47")
    A("ds_write_b64 v149, v[44:45]")
    A("v_lshlrev_b32 v24, 8, v23")
    A("v_lshl_add_u32 v24, v7, 4, v24")
    A(f"v_add_u32 v24, {QB}, v24")
    A("s_mov_b64 exec, 1")
    A(f"ds_add_u32 v19, v18 offset:{QCNT-FL}")
    A("s_mov_b64 exec, -1")
    lab("L_qw")
    A(f"ds_read_b32 v20, v19 offset:{QCNT-FL}")
    A("s_sub_u32 s44, s44, 1")
    A("s_cbranch_scc1 L_qw_x")
    A("s_waitcnt lgkmcnt(0)")
    A("v_readfirstlane_b32 s49, v20")
    A("s_cmp_ge_u32 s49, 4")
    A("s_cbranch_scc0 L_qw")
    lab("L_qw_x")
    for t in range(4): A(f"ds_read_b128 v[{28+4*t}:{31+4*t}], v24 offset:{t*64}")
    stamp(2)
    def wo_loads():
        for tau in range(4):
            if diag & 1: break
            if tau: A(f"v_add_u32 v{vWO}, 0x2000, v{vWO}")
            A(f"global_load_dwordx4 v[{96+4*tau}:{99+4*tau}], v{vWO}, s[{sWO}:{sWO+1}] {wflags}")
    if not wodelay and not woend:
        C("---- prefetch this wave's 16 rows x 128 columns of wo")
        wo_loads()
    C("---- main loop; this wave takes 16 keys of each of its blocks")
    step = 2 * (4 // CW)
    if CW == 4:
        A("s_mov_b32 s47, 0")
        A("s_mov_b32 s48, 0")
    else:
        A("s_and_b32 s47, s3, 2")
        A(f"s_lshl_b32 s48, s47, {US}")
    A("s_mov_b32 s49, 0")
    A("s_mov_b32 s55, 0")
    A("s_mov_b32 s56, 0x10000")
    lab("L_blk")
    for t in range(4): A(f"v_add_u32 v{8+t}, s48, v{2+t}")
    A(f"s_add_u32 s50, s48, {UNIT}")
    A("v_add_u32 v12, s50, v6")
    A("s_cmp_gt_u32 s49, s47")
    A("s_cbranch_scc1 L_kok")
    A(f"s_mov_b32 s44, {spin}")
    lab("L_kpoll")
    A("s_lshr_b32 s55, s55, 16")
    A("s_sub_u32 s55, s55, 1")
    A("s_cmp_ge_u32 s47, s55")
    A("s_cbranch_scc1 L_loopend")
    A("ds_read_b32 v20, v19")
    A("s_sub_u32 s44, s44, 1")
    A("s_cbranch_scc1 L_loopend")
    A("s_waitcnt lgkmcnt(0)")
    A("v_readfirstlane_b32 s55, v20")
    A("s_and_b32 s49, s55, 0xffff")
    A("s_cmp_gt_u32 s49, s47")
    A("s_cbranch_scc0 L_kpoll")
    if woend == 4:
        A("s_cmp_lt_u32 s55, s56")
        A("s_cbranch_scc1 L_kok")
        A("s_mov_b32 s56, -1")
        C("the stream is ending: fetch this wave's 16 rows x 128 columns of wo behind it")
        wo_loads()
    lab("L_kok")
    for t in range(4): A(f"ds_read_b128 v[{44+4*t}:{47+4*t}], v{8+t}")
    A(f"s_lshr_b32 s51, s48, {US-2}")
    A("s_add_u32 s47, s47, 1")
    A("v_add_u32 v21, s51, v19")
    for t in range(4):
        A(f"s_waitcnt lgkmcnt({3-t})")
        cin = "0" if t == 0 else "v[76:79]"
        A(f"v_mfma_f32_16x16x32_bf16 v[76:79], v[{44+4*t}:{47+4*t}], v[{28+4*t}:{31+4*t}], {cin}")
    A("s_mov_b64 exec, 1")
    A("ds_add_u32 v21, v18 offset:4")
    A("s_mov_b64 exec, -1")
    A("s_cmp_gt_u32 s49, s47")
    A("s_cbranch_scc1 L_vok")
    nop(3)
    A("v_max3_f32 v20, v76, v77, v78")
    A("v_max_f32 v20, v20, v79")
    A("v_cmp_gt_f32 vcc, v20, v15")
    A("s_cbranch_vccz L_nomax1")
    A("s_mov_b32 s52, 1")
    A("s_branch L_newmax")
    lab("L_nomax1")
    def softmax():
        for r in range(4): A(f"v_fma_f32 v{76+r}, v{76+r}, s{sCS}, -v16")
        for r in range(4): A(f"v_exp_f32 v{76+r}, v{76+r}")
        nop(1)
        for r in range(4): A(f"v_cvt_pk_bf16_f32 v{24+r}, v{76+r}, v{76+r}")
        A("v_add_f32 v76, v76, v77")
        A("v_add_f32 v78, v78, v79")
        for r in range(4):
            A(f"v_and_b32 v{80+2*r}, v{24+r}, v13")
            A(f"v_and_b32 v{81+2*r}, v{24+r}, v14")
        A("v_add_f32 v76, v76, v78")
        A("v_add_f32 v17, v17, v76")
    softmax()
    A(f"s_mov_b32 s44, {spin}")
    lab("L_vpoll")
    A("ds_read_b32 v20, v19")
    A("s_sub_u32 s44, s44, 1")
    A("s_cbranch_scc1 L_vok1")
    A("s_waitcnt lgkmcnt(0)")
    A("v_readfirstlane_b32 s55, v20")
    A("s_and_b32 s49, s55, 0xffff")
    A("s_cmp_gt_u32 s49, s47")
    A("s_cbranch_scc0 L_vpoll")
    lab("L_vok1")
    for tau in range(4): A(f"ds_read_b128 v[{60+4*tau}:{63+4*tau}], v12 offset:{tau*256}")
    A("s_branch L_pv")
    lab("L_vok")
    for tau in range(4): A(f"ds_read_b128 v[{60+4*tau}:{63+4*tau}], v12 offset:{tau*256}")
    A("v_max3_f32 v20, v76, v77, v78")
    A("v_max_f32 v20, v20, v79")
    A("v_cmp_gt_f32 vcc, v20, v15")
    A("s_cbranch_vccz L_nomax2")
    A("s_mov_b32 s52, 0")
    lab("L_newmax")
    C("the running max rose for some head: take the true max over the 16 keys and rescale")
    A("v_mov_b32 v24, v20")
    nop(2)
    A("v_permlane16_swap_b32 v20, v24")
    nop(1)
    A("v_max_f32 v20, v20, v24")
    A("v_mov_b32 v24, v20")
    nop(2)
    A("v_permlane32_swap_b32 v20, v24")
    nop(1)
    A("v_max3_f32 v20, v20, v24, v15")
    A("v_sub_f32 v24, v15, v20")
    A(f"v_mul_f32 v24, s{sCS}, v24")
    A("v_exp_f32 v24, v24")
    A("v_mov_b32 v15, v20")
    A(f"v_mul_f32 v16, s{sCS}, v20")
    A("v_mul_f32 v17, v17, v24")
    for r in range(88, 96): A(f"v_mul_f32 v{r}, v{r}, v24")
    A("s_cmp_eq_u32 s52, 1")
    A("s_cbranch_scc1 L_nomax1")
    lab("L_nomax2")
    softmax()
    lab("L_pv")
    A(f"s_add_u32 s47, s47, {step-1}")
    A(f"s_add_u32 s48, s48, {step*UNIT}")
    A(f"s_and_b32 s48, s48, {RING-1}")
    for tau in range(4):
        A(f"s_waitcnt lgkmcnt({3-tau})")
        A(f"v_mfma_f32_16x16x16_bf16 v[88:91], v[{60+4*tau}:{61+4*tau}], v[{80+2*tau}:{81+2*tau}], v[88:91]")
        A(f"v_mfma_f32_16x16x16_bf16 v[92:95], v[{62+4*tau}:{63+4*tau}], v[{80+2*tau}:{81+2*tau}], v[92:95]")
    A("s_mov_b64 exec, 1")
    A("ds_add_u32 v21, v18 offset:8")
    A("s_mov_b64 exec, -1")
    if wodelay:
        A("s_lshr_b32 s50, s47, 2")
        A(f"s_cmp_lg_u32 s50, {wodelay * 16 // UL // 4}")
        A("s_cbranch_scc1 L_blk")
        if CW == 4:
            A("s_bitcmp1_b32 s47, 1")
            A("s_cbranch_scc1 L_blk")
        C("---- prefetch this wave's 16 rows x 128 columns of wo")
        wo_loads()
    A("s_branch L_blk")
    lab("L_loopend")
    if sync_at:
        A(f"s_add_u32 s90, s60, {sync_at + 1023}")
        A("s_and_b32 s90, s90, 0xfffffc00")
        lab("L_sync")
        A("s_memrealtime s[92:93]")
        A("s_waitcnt lgkmcnt(0)")
        A("s_sub_u32 s92, s92, s90")
        A("s_cmp_lt_i32 s92, 0")
        A("s_cbranch_scc1 L_sync")
    stamp(3)
    if woend == 1:
        C("---- this wave's 16 rows x 128 columns of wo travel while the partial results are exchanged")
        wo_loads()
    C("---- hand the four waves' partial results to the publishing waves through LDS")
    A("v_mov_b32 v24, v17")
    A(f"ds_write_b128 v{vOSC}, v[88:91]")
    A(f"s_mov_b32 s44, {spin}")
    A("v_permlane16_swap_b32 v17, v24")
    A(f"ds_write_b128 v{vOSC}, v[92:95] offset:1024")
    A("v_add_f32 v17, v17, v24")
    A("v_mov_b32 v24, v17")
    nop(2)
    A("v_permlane32_swap_b32 v17, v24")
    nop(1)
    A("v_add_f32 v17, v17, v24")
    A(f"ds_write_b64 v{vMLW}, v[16:17]")
    if woend == 2:
        wo_loads()
    if woend == 4:
        A("s_cmp_eq_u32 s56, -1")
        A("s_cbranch_scc1 L_wodone")
        wo_loads()
        lab("L_wodone")
    A("s_waitcnt lgkmcnt(0)")
    A("s_barrier")
    if woend == 3:
        wo_loads()
    stamp(4)
    C("---- hand-off 1: gather the 8 splits x 4 batches of this wave's 16 rows of one head")
    if h1ack: A("s_barrier")
    if pdelay: A(f"s_sleep {pdelay}")
    poll("L_h1poll", [f"global_load_dwordx4 v[52:55], v{vH1O}, {WS} {ldf}",
                      f"global_load_dwordx4 v[56:59], v{vH1O}, {WS} offset:512 {ldf}"], [55, 59], apoll & 1)
    stamp(5)
    if stamps: A(f"s_sub_u32 s80, {spin}, s44")
    A("v_max_f32 v20, v55, v59")
    A("v_perm_b32 v44, v53, v52, s57")
    A("v_perm_b32 v45, v57, v56, s57")
    A("v_max_f32_dpp v20, v20, v20 quad_perm:[1,0,3,2] row_mask:0xf bank_mask:0xf")
    A("v_perm_b32 v44, v54, v44, s58")
    A("v_perm_b32 v45, v58, v45, s58")
    A("v_max_f32_dpp v20, v20, v20 quad_perm:[2,3,0,1] row_mask:0xf bank_mask:0xf")
    A("v_sub_f32 v46, v55, v20")
    A("v_sub_f32 v47, v59, v20")
    A("v_exp_f32 v46, v46")
    A("v_exp_f32 v47, v47")
    A(f"s_mov_b32 s44, {spin}")
    A("v_mul_f32 v60, v52, v46")
    A("v_add_f32 v20, v46, v47")
    A("v_mul_f32 v61, v53, v46")
    A("v_mul_f32 v62, v54, v46")
    A("v_mul_f32 v63, v44, v46")
    A("v_add_f32_dpp v20, v20, v20 quad_perm:[1,0,3,2] row_mask:0xf bank_mask:0xf")
    A("v_fmac_f32 v60, v56, v47")
    A("v_fmac_f32 v61, v57, v47")
    A("v_add_f32_dpp v20, v20, v20 quad_perm:[2,3,0,1] row_mask:0xf bank_mask:0xf")
    A("v_fmac_f32 v62, v58, v47")
    A("v_fmac_f32 v63, v45, v47")
    A("v_rcp_f32 v20, v20")
    for r in range(4): A(f"v_add_f32_dpp v{60+r}, v{60+r}, v{60+r} quad_perm:[1,0,3,2] row_mask:0xf bank_mask:0xf")
    for r in range(4): A(f"v_add_f32_dpp v{60+r}, v{60+r}, v{60+r} quad_perm:[2,3,0,1] row_mask:0xf bank_mask:0xf")
    for r in range(4): A(f"v_mul_f32 v{60+r}, v{60+r}, v20")
    for r in range(4): A(f"v_cvt_pk_bf16_f32 v{60+r}, v{60+r}, v{60+r}")
    for r in range(4):
        A(f"v_and_b32 v{80+2*r}, v{60+r}, v13")
        A(f"v_and_b32 v{81+2*r}, v{60+r}, v14")
        if r:
            tau = r - 1
            c0 = "0" if tau == 0 else "v[88:91]"
            c1 = "0" if tau == 0 else "v[92:95]"
            A(f"v_mfma_f32_16x16x16_bf16 v[88:91], v[{96+4*tau}:{97+4*tau}], v[{80+2*tau}:{81+2*tau}], {c0}")
            A(f"v_mfma_f32_16x16x16_bf16 v[92:95], v[{98+4*tau}:{99+4*tau}], v[{80+2*tau}:{81+2*tau}], {c1}")
    A("v_mfma_f32_16x16x16_bf16 v[88:91], v[108:109], v[86:87], v[88:91]")
    A("v_mfma_f32_16x16x16_bf16 v[92:95], v[110:111], v[86:87], v[92:95]")
    C("second scratch area: the start of the ring is free by now")
    A("s_cmp_ge_u32 s3, 2")
    nop(6)
    A(f"ds_write_b128 v{vS2W}, v[88:91]")
    A(f"ds_write_b128 v{vS2W}, v[92:95] offset:1024")
    A("s_waitcnt lgkmcnt(0)")
    A("s_barrier")
    A("s_cbranch_scc1 L_h2")
    for w in range(4): A(f"ds_read_b128 v[{60+4*w}:{63+4*w}], v{vS2R} offset:{w*2048}")
    A("s_waitcnt lgkmcnt(2)")
    A("v_pk_add_f32 v[60:61], v[60:61], v[64:65]")
    A("v_pk_add_f32 v[62:63], v[62:63], v[66:67]")
    A("s_waitcnt lgkmcnt(0)")
    A("v_pk_add_f32 v[68:69], v[68:69], v[72:73]")
    A("v_pk_add_f32 v[70:71], v[70:71], v[74:75]")
    A("v_pk_add_f32 v[60:61], v[60:61], v[68:69]")
    A("v_pk_add_f32 v[62:63], v[62:63], v[70:71]")
    for r in range(4): A(f"v_and_or_b32 v{60+r}, v{60+r}, v{vMSK}, s{sT8}")
    A(f"global_store_dwordx4 v{vR2P}, v[60:63], {WS} {stf}")
    stamp(6)
    if h2ack:
        if h2ack == 1: A("s_waitcnt vmcnt(0)")
        A("s_barrier")
    A("s_branch L_fin")
    lab("L_h2")
    A("s_cmp_eq_u32 s3, 3")
    if h2ack: A("s_barrier")
    A("s_cbranch_scc1 L_fin")
    if pdelay2: A(f"s_sleep {pdelay2}")
    stamp(6)
    C("---- hand-off 2: sum 64 row-slices for 8 outputs of one batch")
    poll("L_h2poll", [f"global_load_dwordx4 v[52:55], v{vH2A}, {WS} {ldf}",
                      f"global_load_dwordx4 v[56:59], v{vH2B}, {WS} {ldf}"], list(range(52, 60)), apoll & 2)
    stamp(7)
    if stamps and stlbl == 'L_h2poll': A(f"s_sub_u32 s80, {spin}, s44")
    A("v_pk_add_f32 v[52:53], v[52:53], v[56:57]")
    A("v_pk_add_f32 v[54:55], v[54:55], v[58:59]")
    nop(1)
    A("v_permlane32_swap_b32 v52, v53")
    A("v_permlane32_swap_b32 v54, v55")
    nop(1)
    A("v_add_f32 v52, v52, v53")
    A("v_add_f32 v54, v54, v55")
    nop(2)
    A("v_permlane16_swap_b32 v52, v54")
    nop(1)
    A("v_add_f32 v52, v52, v54")
    for dpp in ("quad_perm:[2,3,0,1]", "row_ror:4", "row_ror:8"):
        nop(2)
        A(f"v_add_f32_dpp v52, v52, v52 {dpp} row_mask:0xf bank_mask:0xf")
    A("s_mov_b32 s46, 0x00010001")
    A("s_mov_b32 s47, 0x00010001")
    A("v_mov_b32_dpp v53, v52 quad_perm:[1,0,3,2] row_mask:0xf bank_mask:0xf")
    A("s_mov_b64 exec, s[46:47]")
    A("v_cvt_pk_bf16_f32 v52, v52, v53")
    A(f"global_store_dword v{vOUT}, v52, s[{sOUT}:{sOUT+1}] {outf}")
    A("s_cmp_lg_u32 s2, 0")
    A("s_cbranch_scc1 L_fin")
    C("every workgroup has published tagged data by now: advance the hand-off epoch")
    A("s_mov_b64 exec, 1")
    A(f"v_mov_b32 v25, s{sTAG}")
    A("v_mov_b32 v24, 0")
    A(f"global_store_dword v24, v25, {WS} offset:{EPO}")
    lab("L_fin")
    if stamps:
        A("s_waitcnt vmcnt(0)")
        stamp(8)
        if probe is not None:
            probe_code("c")
        dump_stamps()
    A("s_endpgm")

    lab("L_loader")
    if prio: A(f"s_setprio {prio}")
    A("v_lshrrev_b32 v7, 4, v0")
    A("v_and_b32 v8, 15, v0")
    for i in range(4):
        A(f"v_add_u32 v9, {4*i}, v7")
        A("v_xor_b32 v9, v9, v8")
        A("v_lshlrev_b32 v9, 4, v9")
        A(f"v_lshl_add_u32 v{2+i}, v7, 8, v9")
    A("v_lshlrev_b32 v6, 4, v0")
    A(f"v_mov_b32 v10, {FL}")
    A(f"s_lshl_b32 s40, s{sPAIR}, 22")
    A("s_mov_b32 s41, 0")
    A("s_mov_b32 s42, 0")
    A(f"s_mov_b32 s43, {0 if peel else -((UL - 1 + depth) // UL)}")
    A("v_mov_b32 v9, 0")
    A("v_mov_b32 v12, 0")
    A("s_mov_b32 s51, 0")
    A(f"v_mov_b32 v13, {FL}")
    A("s_mov_b32 s22, 0x8000000"); A("s_mov_b32 s23, 0x20000")
    A("s_mov_b32 s26, 0x8000000"); A("s_mov_b32 s27, 0x20000")
    def addr(static=True):
        if static:
            A("s_lshl_b32 s46, s41, 3")
            A(f"s_add_u32 s46, s46, s{sSPL}")
        A(f"s_lshr_b32 s47, s46, {G.bit_length()-1}")
        A(f"s_and_b32 s48, s46, {G-1}")
        if rrot:
            A(f"s_mul_i32 s49, s{sPAIR}, {rrot}")
            A("s_add_u32 s47, s47, s49")
            A(f"s_and_b32 s47, s47, {R-1}")
        if grot:
            A(f"s_mul_i32 s49, s{sPAIR}, {grot}")
            A("s_add_u32 s48, s48, s49")
            A(f"s_and_b32 s48, s48, {G-1}")
        A(f"s_mul_i32 s47, s47, {span}")
        A(f"s_mul_i32 s48, s48, {piece*1024}")
        A("s_add_u32 s44, s47, s48")
        A("s_add_u32 s44, s44, s40")
    grp = min(piece, 4)
    pubpos = (UL - 1 + depth) % UL
    publag = (UL - 1 + depth) // UL
    rapos = UL - 5
    assert cah >= publag
    uid = [0]
    def unit(which, u_static=None):
        srd = "s[20:23]" if which == 0 else "s[24:27]"
        k = uid[0]; uid[0] += 1
        if u_static is None or u_static >= ring:
            if which == 1: A("s_waitcnt lgkmcnt(0)")
            A("v_readfirstlane_b32 s50, v12")
            A("s_cmp_ge_u32 s50, s51")
            A(f"s_cbranch_scc1 L_free{k}")
            A(f"s_mov_b32 s52, {spin}")
            lab(f"L_wfree{k}")
            A("ds_read_b32 v12, v13 offset:4")
            A("s_sub_u32 s52, s52, 1")
            A(f"s_cbranch_scc1 L_free{k}")
            A("s_waitcnt lgkmcnt(0)")
            A("v_readfirstlane_b32 s50, v12")
            A("s_cmp_ge_u32 s50, s51")
            A(f"s_cbranch_scc0 L_wfree{k}")
            lab(f"L_free{k}")
        for i in range(UL):
            pi, kk = divmod(i, piece)
            if i % grp == 0:
                A(f"s_add_u32 s45, s44, {pi*pstride + kk*1024}")
                A(f"s_add_u32 m0, s42, {i*1024}")
            g_idx = None if u_static is None else u_static * UL + i
            if g_idx is None or g_idx >= depth:
                A(f"s_waitcnt vmcnt({depth-1})")
            elif i % grp == 0:
                nop(1)
            if g_idx is not None:
                marks = {depth: 1, depth + 15: 2, depth + 31: 3, depth + 63: 4, depth + 95: 5, 127: 6}
                if g_idx in marks: stamp(marks[g_idx])
            va = f"v{2+(i&3)}" if which == 0 else "v6"
            off = (i % grp) * 1024
            A(f"buffer_load_dwordx4 {va}, {srd}, s45 offen offset:{off} {flags} lds")
            if i == pubpos and (u_static is None or u_static >= publag):
                A("s_add_u32 s43, s43, 1")
                A("v_max_i32 v11, s43, v9" if not peel else "v_mov_b32 v11, s43")
                A("ds_write_b32 v10, v11")
            if i == rapos and (u_static is None or u_static + 1 >= ring):
                A(f"s_add_u32 s50, s42, {UNIT}")
                A(f"s_and_b32 s50, s50, {RING-1}")
                A(f"s_lshr_b32 s50, s50, {US-2}")
                A("v_add_u32 v13, s50, v10")
                A("s_lshl_b32 s51, s41, 1")
                A(f"s_add_u32 s51, s51, {which+1}")
                A(f"s_lshr_b32 s51, s51, {ring.bit_length()-1}")
                A(f"s_lshl_b32 s51, s51, {CW.bit_length()-1}")
                A("ds_read_b32 v12, v13 offset:4")
                if which == 1:
                    A("s_lshl_b32 s50, s41, 2")
                    A("v_add_u32 v16, s50, v10")
                    A(f"ds_read_b32 v17, v16 offset:{MBOX-FL+4}")
            if u_static is not None and g_idx == bar_at - 1:
                A("s_barrier")
        A(f"s_add_u32 s42, s42, {UNIT}")
        A(f"s_and_b32 s42, s42, {RING-1}")
    npeel = ring // 2
    assert bar_at <= depth
    addr()
    A("s_waitcnt lgkmcnt(0)")
    stamp(6)
    A(f"s_mov_b32 s20, s{sK}"); A(f"s_mov_b32 s21, s{sK+1}")
    A(f"s_mov_b32 s24, s{sV}"); A(f"s_mov_b32 s25, s{sV+1}")
    A(f"s_load_dword s{sTAG}, {WS}, {EPO}")
    if bar_at == 0: A("s_barrier")
    if peel:
        for n in range(npeel):
            if n: addr()
            unit(0, 2*n)
            unit(1, 2*n+1)
            A("s_add_u32 s41, s41, 1")
    else:
        assert bar_at == 0
        stamp(5)
        A("s_branch L_first")
    lab("L_ld")
    if stamps:
        for bi, si in ((1, 1), (2, 2), (3, 3), (4, 4)):
            if peel: break
            A(f"s_cmp_lg_u32 s41, {bi*16//UL}")
            A(f"s_cbranch_scc1 L_nosta{si}")
            stamp(si)
            lab(f"L_nosta{si}")
        A(f"s_cmp_lg_u32 s41, {5*16//UL}")
        A("s_cbranch_scc1 L_nost7")
        stamp(7)
        lab("L_nost7")
        A(f"s_cmp_lg_u32 s41, {NBW//2}")
        A("s_cbranch_scc1 L_nost9")
        stamp(9)
        lab("L_nost9")
    A("s_waitcnt lgkmcnt(0)")
    A("v_readfirstlane_b32 s46, v17")
    A("s_cmp_lg_u32 s46, 0")
    A("s_cbranch_scc1 L_got")
    A(f"s_mov_b32 s52, {spin}")
    lab("L_wmb")
    A(f"ds_read_b32 v17, v16 offset:{MBOX-FL+4}")
    A("s_sub_u32 s52, s52, 1")
    A("s_cbranch_scc1 L_drain")
    A("s_waitcnt lgkmcnt(0)")
    A("v_readfirstlane_b32 s46, v17")
    A("s_cmp_lg_u32 s46, 0")
    A("s_cbranch_scc0 L_wmb")
    lab("L_got")
    A(f"s_cmp_gt_u32 s46, {NB}")
    A("s_cbranch_scc1 L_drain")
    A("s_sub_u32 s46, s46, 1")
    addr(False)
    lab("L_first")
    unit(0)
    unit(1)
    A("s_add_u32 s41, s41, 1")
    A("s_branch L_ld")
    lab("L_drain")
    C("units not yet published; the upper half of the word announces the total (+1)")
    if stamps: A("s_mov_b32 s80, s41")
    A("s_lshl_b32 s50, s41, 17")
    A("s_add_u32 s43, s43, s50")
    A("s_add_u32 s43, s43, 0x10000")
    if woend == 4:
        A("v_mov_b32 v11, s43")
        A("ds_write_b32 v10, v11")
    A("s_mov_b32 s48, 0")
    vec_coords("s48")
    r1_addr(28)
    for j in range(publag - 1, -1, -1):
        A(f"s_waitcnt vmcnt({UL*j})")
        A("s_add_u32 s43, s43, 1")
        A("v_mov_b32 v11, s43")
        A("ds_write_b32 v10, v11")
    stamp(8)
    lab("L_publish")
    C("---- waves 4 and 5 merge the four partial results and publish them (normalised rows + log-sum-exp)")
    if t2:
        r2_addr(34)
        A("v_mov_b32 v36, 0"); A("v_mov_b32 v37, 1"); A("v_mov_b32 v38, 1"); A("v_mov_b32 v39, 0")
        if t2 == 3:
            A("s_mov_b32 exec_lo, 0x01010101")
            A("s_mov_b32 exec_hi, 0x01010101")
            A(f"global_load_dword v35, v34, {WS}")
            A("s_mov_b64 exec, -1")
    A(f"v_add_u32 v25, {WST}, v25")
    A("v_lshlrev_b32 v27, 3, v26")
    A(f"v_add_u32 v27, {WST+8192}, v27")
    A("v_mov_b32 v29, 0xffffff00")
    A("s_mov_b32 s56, 0x07060501")
    A("s_mov_b32 s57, 0x07060502")
    A("s_mov_b32 s58, 0x07060503")
    A("s_waitcnt lgkmcnt(0)")
    A(f"s_add_u32 s{sTAG}, s{sTAG}, 1")
    A(f"s_and_b32 s{sT8}, s{sTAG}, 0xff")
    A("s_barrier")
    for w in range(4): A(f"ds_read_b64 v[{44+2*w}:{45+2*w}], v27 offset:{w*32}")
    for w in range(4): A(f"ds_read_b128 v[{60+4*w}:{63+4*w}], v25 offset:{w*2048}")
    A("s_waitcnt lgkmcnt(4)")
    A("v_max3_f32 v30, v44, v46, v48")
    A("v_max_f32 v30, v30, v50")
    for w in range(4): A(f"v_sub_f32 v{52+2*w}, v{44+2*w}, v30")
    for w in range(4): A(f"v_exp_f32 v{52+2*w}, v{52+2*w}")
    A("s_waitcnt lgkmcnt(0)")
    A("v_mul_f32 v31, v45, v52")
    A("v_pk_mul_f32 v[76:77], v[60:61], v[52:53] op_sel_hi:[1,0]")
    A("v_fmac_f32 v31, v47, v54")
    A("v_pk_mul_f32 v[78:79], v[62:63], v[52:53] op_sel_hi:[1,0]")
    A("v_fmac_f32 v31, v49, v56")
    A("v_pk_fma_f32 v[76:77], v[64:65], v[54:55], v[76:77] op_sel_hi:[1,0,1]")
    A("v_fmac_f32 v31, v51, v58")
    A("v_pk_fma_f32 v[78:79], v[66:67], v[54:55], v[78:79] op_sel_hi:[1,0,1]")
    A("v_rcp_f32 v32, v31")
    A("v_log_f32 v31, v31")
    A("v_pk_fma_f32 v[76:77], v[68:69], v[56:57], v[76:77] op_sel_hi:[1,0,1]")
    A("v_pk_fma_f32 v[78:79], v[70:71], v[56:57], v[78:79] op_sel_hi:[1,0,1]")
    A("v_pk_fma_f32 v[76:77], v[72:73], v[58:59], v[76:77] op_sel_hi:[1,0,1]")
    A("v_pk_fma_f32 v[78:79], v[74:75], v[58:59], v[78:79] op_sel_hi:[1,0,1]")
    A("v_add_f32 v30, v30, v31")
    A("v_pk_mul_f32 v[78:79], v[78:79], v[32:33] op_sel_hi:[1,0]")
    A("v_pk_mul_f32 v[76:77], v[76:77], v[32:33] op_sel_hi:[1,0]")
    A(f"v_and_or_b32 v83, v30, v29, s{sT8}")
    A("v_perm_b32 v82, v78, v79, s58")
    A("v_perm_b32 v80, v76, v79, s56")
    A("v_perm_b32 v81, v77, v79, s57")
    A(f"global_store_dwordx4 v28, v[80:83], {WS} {stf}")
    stamp(11)
    if t2 == 1:
        A(f"global_store_dwordx4 v34, v[36:39], {WS} {stf}")
    if t2 == 2:
        A("s_mov_b32 exec_lo, 0x01010101")
        A("s_mov_b32 exec_hi, 0x01010101")
        A(f"global_load_dword v35, v34, {WS}")
        A("s_mov_b64 exec, -1")
    if h1ack:
        if h1ack == 1: A(f"s_waitcnt vmcnt({1 if t2 in (1, 2) else 0})")
        A("s_barrier")
    if probe is not None: probe_code("p")
    if stamps: dump_stamps()
    A("s_waitcnt vmcnt(0)")
    A("s_endpgm")

    lab("L_claimer")
    SS = S if dyn else NBW + 1
    C("clear the LDS flags; block list: the first steps are fixed, later ones are claimed")
    A("v_lshlrev_b32 v10, 3, v0")
    A(f"v_add_u32 v10, {FL}, v10")
    A("v_mov_b32 v14, 0")
    A("v_mov_b32 v15, 0")
    A("ds_write_b64 v10, v[14:15]")
    for j in range(4):
        A(f"v_lshl_add_u32 v9, v0, 2, {j}")
        A(f"v_lshl_add_u32 v{16+j}, v9, 3, s{sSPL}")
        A(f"v_add_u32 v{16+j}, 1, v{16+j}")
        A(f"v_cmp_gt_u32 vcc, {SS}, v9")
        nop(2)
        A(f"v_cndmask_b32 v{16+j}, v14, v{16+j}, vcc")
    A("v_lshlrev_b32 v10, 4, v0")
    A(f"v_add_u32 v10, {MBOX}, v10")
    A("ds_write_b128 v10, v[16:19]")
    A("s_waitcnt lgkmcnt(0)")
    A("s_barrier")
    A(f"s_load_dword s{sTAG}, {WS}, {EPO}")
    A("s_mov_b32 s48, 2")
    vec_coords("s48")
    r1_addr(28)
    if pw1 or pw2:
        C("bring this workgroup's hand-off lines on chip ahead of time (written with the previous tag), staggered")
        r2_addr(34)
        A("v_subrev_u32 v35, 0x8000, v28")
        A("v_subrev_u32 v36, 0x10000, v34")
        A(f"v_mov_b32 v4, {FL}")
        A(f"s_and_b32 s43, s{sPAIR}, 15")
        A(f"s_mul_i32 s43, s43, {pwat * 16 // UL}")
        A(f"s_add_u32 s43, s43, {10 * 16 // UL}")
        A(f"s_mov_b32 s44, {spin}")
        lab("L_pwd")
        A("ds_read_b32 v6, v4")
        A("s_sub_u32 s44, s44, 1")
        A("s_cbranch_scc1 L_pwd_x")
        A("s_waitcnt lgkmcnt(0)")
        A("v_readfirstlane_b32 s45, v6")
        A("s_cmp_ge_u32 s45, s43")
        A("s_cbranch_scc0 L_pwd")
        lab("L_pwd_x")
        A("s_waitcnt lgkmcnt(0)")
        for r in range(4): A(f"v_mov_b32 v{40+r}, s{sTAG}")
        if prd:
            A("s_mov_b32 exec_lo, 0x01010101")
            A("s_mov_b32 exec_hi, 0x01010101")
            if pw1:
                A(f"global_load_dword v40, v28, {WS}")
                A(f"global_load_dword v41, v35, {WS}")
            if pw2:
                A(f"global_load_dword v42, v34, {WS}")
                A(f"global_load_dword v43, v36, {WS}")
            A("s_mov_b64 exec, -1")
        else:
          if pw1:
            A(f"global_store_dwordx4 v28, v[40:43], {WS} {stf}")
            A(f"global_store_dwordx4 v35, v[40:43], {WS} {stf}")
          if pw2:
            A(f"global_store_dwordx4 v34, v[40:43], {WS} {stf}")
            A(f"global_store_dwordx4 v36, v[40:43], {WS} {stf}")
        A("s_waitcnt vmcnt(0)")
    if dyn:
        A(f"s_lshl_b32 s42, s{sPAIR}, {cts}")
        A(f"s_add_u32 s42, s42, {CTOFF}")
        A("v_mov_b32 v2, s42")
        A(f"s_add_u32 s28, s{sWS}, s42")
        A(f"s_addc_u32 s29, s{sWS+1}, 0")
        A("v_mov_b32 v3, 1")
        A("s_mov_b64 s[30:31], 0")
        A(f"s_lshl_b32 s38, s{sSPL}, 3")
        A("s_sub_u32 s39, 64, s38")
        A(f"v_mov_b32 v4, {FL}")
        A(f"v_mov_b32 v5, {MBOX + 4*S}")
        A(f"s_mov_b32 s43, {2*S - cah}")
        A("s_mov_b64 exec, 1")
        A(f"s_mov_b32 s44, {spin}")
        lab("L_cl")
        A("ds_read_b32 v6, v4")
        A("s_sub_u32 s44, s44, 1")
        A("s_cbranch_scc1 L_cl_x")
        A("s_waitcnt lgkmcnt(0)")
        A("v_readfirstlane_b32 s45, v6")
        A("s_and_b32 s45, s45, 0xffff")
        A("s_cmp_ge_u32 s45, s43")
        A("s_cbranch_scc0 L_cl")
        if satom == 2:
            LIM = NBW - S
            C("eight 8-bit counters in one word, one per column of blocks: take from the own column first, then from the fullest")
            lab("L_pick")
            A("s_lshr_b64 s[46:47], s[30:31], s38")
            A("s_lshl_b64 s[48:49], s[30:31], s39")
            A("s_cmp_eq_u32 s38, 0")
            A("s_cselect_b64 s[48:49], 0, s[48:49]")
            A("s_or_b64 s[46:47], s[46:47], s[48:49]")
            A("s_and_b32 s45, s46, 0xff")
            A("s_mov_b32 s50, 0")
            A(f"s_cmp_lt_u32 s45, {LIM}")
            A("s_cbranch_scc1 L_take")
            A(f"s_mov_b32 s50, {LIM << 3}")
            for j in range(1, 8):
                A(f"s_bfe_u32 s45, s{46 + j // 4}, {0x80000 + 8 * (j % 4):#x}")
                A(f"s_lshl3_add_u32 s45, s45, {j}")
                A("s_min_u32 s50, s50, s45")
            A(f"s_mov_b32 s45, {NB + 1}")
            A(f"s_cmp_ge_u32 s50, {LIM << 3}")
            A("s_cbranch_scc1 L_post")
            lab("L_take")
            A(f"s_add_u32 s50, s50, s{sSPL}")
            A("s_and_b32 s50, s50, 7")
            A("s_lshl_b32 s51, s50, 3")
            A("s_lshl_b64 s[46:47], 1, s51")
            A("s_mov_b64 s[30:31], s[46:47]")
            A("s_atomic_add_x2 s[46:47], s[28:29], 0x0 glc")
            A("s_waitcnt lgkmcnt(0)")
            A("s_add_u32 s30, s30, s46")
            A("s_addc_u32 s31, s31, s47")
            A("s_lshr_b64 s[46:47], s[46:47], s51")
            A("s_and_b32 s45, s46, 0xff")
            A(f"s_cmp_ge_u32 s45, {LIM}")
            A("s_cbranch_scc1 L_pick")
            A("s_lshl3_add_u32 s45, s45, s50")
            A(f"s_add_u32 s45, s45, {8*S + 1}")
            lab("L_post")
            A("s_add_u32 s43, s43, 2")
            A("v_mov_b32 v7, s45")
            A("ds_write_b32 v5, v7")
            A("v_add_u32 v5, 4, v5")
        elif satom:
            A("s_mov_b32 s45, 1")
            A("s_atomic_add s45, s[28:29], 0x0 glc")
            A("s_add_u32 s43, s43, 2")
            A("s_waitcnt lgkmcnt(0)")
            A(f"s_add_u32 s45, s45, {8*S + 1}")
            A("v_mov_b32 v7, s45")
            A("ds_write_b32 v5, v7")
            A("v_add_u32 v5, 4, v5")
        else:
            A(f"global_atomic_add v7, v2, v3, {WS} sc0 sc1")
            A("s_add_u32 s43, s43, 2")
            A("s_waitcnt vmcnt(0)")
            A(f"v_add_u32 v7, {8*S + 1}, v7")
            A("ds_write_b32 v5, v7")
            A("v_readfirstlane_b32 s45, v7")
            A("v_add_u32 v5, 4, v5")
        A(f"s_cmp_gt_u32 s45, {NB}")
        A("s_cbranch_scc0 L_cl")
        lab("L_cl_x")
        A("s_mov_b64 exec, -1")
    A("s_branch L_publish")
    lab("L_end")
    A("s_endpgm")

    src = HEAD + f"; @launch grid=(256,1,1) block=(384,1,1) lds={LDS}\n"
    src += f""".amdgcn_target "amdgcn-amd-amdhsa--gfx950"
.text
.globl {KN}
.p2align 8
.type {KN},@function
{KN}:
""" + "\n".join(L) + f"""
.section .rodata,"a"
.p2align 6
.amdhsa_kernel {KN}
  .amdhsa_next_free_vgpr 176
  .amdhsa_next_free_sgpr 96
  .amdhsa_accum_offset 176
  .amdhsa_group_segment_fixed_size 0
  .amdhsa_kernarg_size 64
  .amdhsa_user_sgpr_count 2
  .amdhsa_user_sgpr_kernarg_segment_ptr 1
  .amdhsa_system_sgpr_workgroup_id_x 1
  .amdhsa_float_denorm_mode_32 3
.end_amdhsa_kernel
"""
    return src

if __name__ == "__main__":
    kw = eval("dict(" + (sys.argv[2] if len(sys.argv) > 2 else "") + ")")
    open(sys.argv[1], "w").write(gen(**kw))
```

```python
import math, sys, struct

KN = "standalone__gqa_block_cached__decode_kernel"
HEAD = """; Kernarg layout for this problem (64 bytes, ptrs only, base s[0:1]):
;
"""

def f2u(x):
    return struct.unpack("<I", struct.pack("<f", x))[0]

def gen(depth=21, S=60, cah=4, qdelay=8, rrot=4, spin=1 << 19):
    L = []
    def A(s, c=None): L.append("    " + s + (f"{' ' * max(1, 44 - len(s))}; {c}" if c else ""))
    def lab(s): L.append(s + ":")
    def nop(n): A(f"s_nop {n-1}")
    def C(s): L.append("    ; " + s)

    RING = 128 * 1024
    NB = 512
    NBW = NB // 8
    LIM = NBW - S
    WST = RING
    FL = RING + 16384
    QCNT, PWF, MBOX = FL + 128, FL + 132, FL + 256
    QB = FL + 1024
    LDS = QB + 1024
    EPO, CTOFF, QOFF, R1OFF, R2OFF = 0, 32768, 64 << 10, 1 << 20, 3 << 19
    cs = (128 ** -0.5) * math.log2(math.e)
    assert 2 * S - cah > 18 and 8 * LIM < 190 and cah >= 2

    sX, sK, sV, sWQ, sWO, sOUT, sWS = 4, 6, 8, 10, 12, 14, 18
    WS = f"s[{sWS}:{sWS+1}]"
    sPAIR, sSPL, sB, sHKV, sTAG, sCS, sT8, sHEAD, sHALF = 32, 33, 34, 35, 36, 37, 53, 40, 42

    def lds_wait(lbl, off, cmp, n):
        lab(lbl)
        A(f"ds_read_b32 v20, v19 offset:{off}")
        A("s_sub_u32 s44, s44, 1")
        A(f"s_cbranch_scc1 {lbl}_x")
        A("s_waitcnt lgkmcnt(0)")
        A("v_readfirstlane_b32 s49, v20")
        A(f"{cmp} s49, {n}")
        A(f"s_cbranch_scc0 {lbl}")
        lab(f"{lbl}_x")
    def vec_coords(iw):
        A("v_bfe_u32 v24, v0, 3, 2", "g")
        A("v_bfe_u32 v25, v0, 2, 1", "i")
        A("v_lshrrev_b32 v26, 5, v0")
        A(f"v_add_u32 v26, {iw}, v26", "a: head (R1) or batch (R2)")
        A("v_lshlrev_b32 v25, 10, v25")
        A("v_lshl_add_u32 v25, v24, 8, v25")
        A("v_lshl_add_u32 v25, v26, 6, v25")
        A("v_and_b32 v27, 3, v0")
        A("v_lshl_add_u32 v25, v27, 4, v25", "scratch offset i*1024 + (g*16 + a*4 + jj)*16")
        A("v_and_b32 v27, 7, v0")
        A("v_lshlrev_b32 v27, 4, v27", "place inside the 128-byte line")
    def r1_addr(dst):
        C("R1 line ((kv head*4 + head)*4 + g)*32 + b*8 + s")
        A(f"v_lshl_add_u32 v{dst}, v26, 14, v27")
        A(f"v_lshl_add_u32 v{dst}, v24, 12, v{dst}")
        A(f"s_lshl_b32 s54, s{sB}, 3")
        A(f"s_add_u32 s54, s54, s{sSPL}")
        A(f"s_lshl_b32 s41, s{sHKV}, 16")
        A("s_lshl_b32 s45, s54, 7")
        A("s_add_u32 s41, s41, s45")
        A(f"s_add_u32 s41, s41, {R1OFF}")
        A(f"v_add_u32 v{dst}, s41, v{dst}")
    def r2_addr(dst):
        C("R2 line ((b*4 + batch)*4 + g)*64 + kv head*8 + s")
        A(f"v_lshl_add_u32 v{dst}, v26, 15, v27")
        A(f"v_lshl_add_u32 v{dst}, v24, 13, v{dst}")
        A(f"s_lshl_b32 s41, s{sB}, 10")
        A("s_and_b32 s45, s2, 63")
        A("s_add_u32 s41, s41, s45")
        A("s_lshl_b32 s41, s41, 7")
        A(f"s_add_u32 s41, s41, {R2OFF}")
        A(f"v_add_u32 v{dst}, s41, v{dst}")

    C("workgroups past the 256 that carry work leave at once")
    A("s_cmp_ge_u32 s2, 256")
    A("s_cbranch_scc1 L_end0")
    A("s_load_dwordx16 s[4:19], s[0:1], 0")
    A("v_lshrrev_b32 v1, 6, v0")
    A("v_and_b32 v0, 63, v0")
    A(f"s_lshr_b32 s{sPAIR}, s2, 3", "pair = b*8 + kv head")
    A("v_readfirstlane_b32 s3, v1", "wave")
    A(f"s_and_b32 s{sSPL}, s2, 7")
    A(f"s_lshr_b32 s{sB}, s2, 6")
    A(f"s_and_b32 s{sHKV}, s{sPAIR}, 7")
    A("s_cmp_eq_u32 s3, 4")
    A("s_cbranch_scc1 L_loader")
    A("s_cmp_lg_u32 s3, 5")
    A("s_cbranch_scc1 L_cons0")
    C("one load pulls the kernel's code into L2")
    A("s_getpc_b64 s[28:29]")
    lab("L_pc")
    A("v_lshlrev_b32 v2, 7, v0")
    A("v_min_u32 v2, L_codeend - L_pc - 4, v2")
    A("global_load_dword v100, v2, s[28:29]")
    A("s_barrier")
    A("s_branch L_claimer")
    lab("L_cons0")
    A("s_barrier", "the LDS flags are initialised from here on")
    A("s_branch L_cons")
    lab("L_end0")
    A("s_endpgm")

    lab("L_loader")
    A("s_setprio 3")
    C("clear the LDS flags and the block list")
    A("v_lshlrev_b32 v6, 4, v0")
    for r in range(12, 16): A(f"v_mov_b32 v{r}, 0")
    A(f"v_add_u32 v10, {FL}, v6")
    A("ds_write_b128 v10, v[12:15]")
    A(f"v_mov_b32 v10, {FL}")
    A("v_mov_b32 v11, 2")
    A("ds_write_b32 v10, v11 offset:12", "slot 0 holds no V rows in its first round")
    C("wq tile: rows 256*(b>>1) .. +256, 32 columns; lane = (row l>>2, 16-byte piece l&3)")
    A("v_lshrrev_b32 v7, 2, v0")
    A("v_and_b32 v8, 3, v0")
    A("v_lshlrev_b32 v7, 13, v7")
    A("v_lshl_add_u32 v20, v8, 4, v7")
    for k in range(1, 4): A(f"v_add_u32 v{20+k}, {16*8192 - 1024}, v{19+k}")
    A(f"s_lshr_b32 s45, s{sB}, 1")
    A("s_lshl_b32 s45, s45, 21")
    A("s_and_b32 s46, s2, 63")
    A("s_lshl_b32 s46, s46, 7")
    A("s_add_u32 s45, s45, s46")
    A("s_and_b32 s46, s2, 64")
    A("s_add_u32 s45, s45, s46")
    A("s_mov_b32 s30, 0x400000"); A("s_mov_b32 s31, 0x20000")
    A(f"s_mov_b32 m0, {WST}")
    A("s_waitcnt lgkmcnt(0)")
    A(f"s_mov_b32 s28, s{sWQ}"); A(f"s_mov_b32 s29, s{sWQ+1}")
    lab("L_wq")
    for k in range(4):
        A(f"buffer_load_dwordx4 v{20+k}, s[28:31], s45 offen offset:{k*1024} nt lds")
    A("s_add_u32 m0, m0, 4096")
    A(f"s_add_u32 s45, s45, {64*8192}")
    A(f"s_cmp_lt_u32 m0, {WST + 16384}")
    A("s_cbranch_scc1 L_wq")
    A("s_barrier")
    C("K rows land with their 16-byte pieces XORed by the row number (conflict-free fragment reads)")
    A("v_lshrrev_b32 v7, 4, v0")
    A("v_xor_b32 v7, v7, v0")
    A("v_lshlrev_b32 v2, 4, v7")
    for i in range(1, 4): A(f"v_xor_b32 v{2+i}, {64*i}, v2")
    A(f"s_lshl_b32 s40, s{sPAIR}, 22", "pair base")
    A("s_mov_b32 s42, 0", "LDS offset of the slot")
    eK, eV = 7, 15
    pK, lagK = (eK + depth) % 16, (eK + depth) // 16
    pV, lagV = (eV + depth) % 16, (eV + depth) // 16
    first = min(2 * (1 - lagK) + 2, 2 * (1 - lagV) + 3)
    A(f"s_mov_b32 s43, {first - 1}", "READY: wq tile 2, K(0) 3, K(m) 2m+2, V(m) 2m+5")
    A("v_mov_b32 v11, 0")
    A("s_mov_b32 s51, 0")
    A(f"v_mov_b32 v9, {FL}")
    A(f"s_mov_b32 s20, s{sK}"); A(f"s_mov_b32 s21, s{sK+1}")
    A("s_mov_b32 s22, 0x8000000"); A("s_mov_b32 s23, 0x20000")
    A(f"s_mov_b32 s24, s{sV}"); A(f"s_mov_b32 s25, s{sV+1}")
    A("s_mov_b32 s26, 0x8000000"); A("s_mov_b32 s27, 0x20000")
    A(f"s_mul_i32 s38, s{sPAIR}, {rrot}")
    def addr():
        C("block s46 = (row r, column c): two 4 KiB pieces 32 KiB apart; rows and columns rotated by the pair")
        A("s_lshr_b32 s47, s46, 3")
        A(f"s_add_u32 s48, s46, s{sPAIR}")
        A("s_add_u32 s47, s47, s38")
        A("s_and_b32 s48, s48, 7")
        A("s_and_b32 s47, s47, 63")
        A("s_lshl_b32 s48, s48, 12")
        A("s_lshl_b32 s47, s47, 16")
        A("s_add_u32 s44, s48, s40")
        A("s_add_u32 s44, s44, s47")
    def load(which, i, wait):
        srd = "s[20:23]" if which == 0 else "s[24:27]"
        base = "s44" if which == 0 else "s39"
        va = f"v{2+(i&3)}" if which == 0 else "v6"
        if i % 4 == 0:
            A(f"s_add_u32 m0, s42, {which*8192 + i*1024}")
            A(f"s_add_u32 s45, {base}, {(i//4)*32768}")
        if wait: A(f"s_waitcnt vmcnt({depth-1})")
        A(f"buffer_load_dwordx4 {va}, {srd}, s45 offen offset:{(i % 4) * 1024} nt lds")
    def publish():
        A("s_add_u32 s43, s43, 1")
        A("v_max_i32 v11, s43, v11")
        A("ds_write_b32 v10, v11")
    def slot_wait(sfx):
        C("both halves of the slot must have been released by their consumer waves")
        A("s_waitcnt lgkmcnt(0)")
        A("v_min_u32 v12, v12, v13")
        A(f"s_mov_b32 s52, {spin}")
        A("v_readfirstlane_b32 s50, v12")
        A("s_cmp_ge_u32 s50, s51")
        A(f"s_cbranch_scc1 L_free{sfx}")
        lab(f"L_wfree{sfx}")
        A("ds_read_b64 v[12:13], v9 offset:8")
        A("s_sub_u32 s52, s52, 1")
        A(f"s_cbranch_scc1 L_free{sfx}")
        A("s_waitcnt lgkmcnt(0)")
        A("v_min_u32 v12, v12, v13")
        nop(1)
        A("v_readfirstlane_b32 s50, v12")
        A("s_cmp_ge_u32 s50, s51")
        A(f"s_cbranch_scc0 L_wfree{sfx}")
        lab(f"L_free{sfx}")
    A(f"s_mov_b32 s46, s{sSPL}")
    addr()
    for i in range(8): load(0, i, False)
    A("s_mov_b32 s41, 1", "step")
    A("s_mov_b32 s42, 16384")
    lab("L_ld")
    A("s_mov_b32 s39, s44", "V rows of the previous block")
    A("s_lshl_b32 s46, s41, 3")
    A(f"s_add_u32 s46, s46, s{sSPL}")
    A(f"s_cmp_lt_u32 s41, {S}")
    A("s_cbranch_scc1 L_got")
    C("claimed blocks come from the block list")
    A("s_waitcnt lgkmcnt(0)")
    A("v_readfirstlane_b32 s46, v17")
    A(f"s_mov_b32 s52, {spin}")
    A("s_cmp_lg_u32 s46, 0")
    A("s_cbranch_scc1 L_mb")
    lab("L_wmb")
    A(f"ds_read_b32 v17, v16 offset:{MBOX-FL}")
    A("s_sub_u32 s52, s52, 1")
    A("s_cbranch_scc1 L_drain")
    A("s_waitcnt lgkmcnt(0)")
    A("v_readfirstlane_b32 s46, v17")
    A("s_cmp_lg_u32 s46, 0")
    A("s_cbranch_scc0 L_wmb")
    lab("L_mb")
    A(f"s_cmp_gt_u32 s46, {NB}")
    A("s_cbranch_scc1 L_drain")
    A("s_sub_u32 s46, s46, 1")
    lab("L_got")
    addr()
    slot_wait("a")
    for p in range(16):
        load(p // 8, p % 8, True)
        if p in (pK, pV): publish()
        if p == 11:
            C("read the next slot's release counters and the next block's index ahead of time")
            A("s_add_u32 s50, s42, 16384")
            A(f"s_and_b32 s50, s50, {RING-1}")
            A("s_lshr_b32 s50, s50, 11")
            A("v_add_u32 v9, s50, v10")
            A("s_add_u32 s51, s41, 1")
            A("s_lshr_b32 s51, s51, 3")
            A("s_lshl_b32 s51, s51, 1")
            A("ds_read_b64 v[12:13], v9 offset:8")
            A(f"s_sub_i32 s50, s41, {S-1}")
            A("s_max_i32 s50, s50, 0")
            A("v_lshl_add_u32 v16, s50, 2, v10")
            A(f"ds_read_b32 v17, v16 offset:{MBOX-FL}")
    A("s_add_u32 s42, s42, 16384")
    A(f"s_and_b32 s42, s42, {RING-1}")
    A("s_add_u32 s41, s41, 1")
    A("s_branch L_ld")
    lab("L_drain")
    C("last step: V rows only; the upper half of the READY word announces the number of blocks (+1)")
    A("s_add_u32 s50, s41, 1")
    A("s_lshl_b32 s50, s50, 16")
    A("s_add_u32 s43, s43, s50")
    slot_wait("b")
    A(f"s_load_dword s{sTAG}, {WS}, {EPO}")
    ev = []
    for dm in range(-3, 0):
        ev.append((2*dm + 2, 16*dm + eK)); ev.append((2*dm + 3, 16*dm + eV))
    done_val = max(2*(-1 - lagK) + 2, 2*(-1 - lagV) + 3)
    ev = [e for e in ev if e[0] > done_val]
    for i in range(8):
        load(1, i, True)
        while ev and ev[0][1] <= i - depth:
            publish(); ev.pop(0)
    A("s_mov_b32 s48, 0")
    vec_coords("s48")
    r1_addr(28)
    for val, idx in ev:
        A(f"s_waitcnt vmcnt({7 - idx})")
        publish()
    lab("L_publish")
    C("---- waves 4 and 5 merge the four partial results and publish them (normalised rows + log-sum-exp)")
    r2_addr(34)
    A(f"v_add_u32 v25, {WST}, v25")
    A("v_lshlrev_b32 v27, 3, v26")
    A(f"v_add_u32 v27, {WST+8192}, v27")
    A("v_mov_b32 v29, 0xffffff00")
    A("s_mov_b32 s56, 0x07060501")
    A("s_mov_b32 s57, 0x07060502")
    A("s_mov_b32 s58, 0x07060503")
    A("s_waitcnt lgkmcnt(0)")
    A(f"s_add_u32 s{sTAG}, s{sTAG}, 1")
    A(f"s_and_b32 s{sT8}, s{sTAG}, 0xff")
    A("s_waitcnt vmcnt(0)")
    A("s_barrier", "A: last V rows landed; maxima and sums are in LDS")
    for w in range(4): A(f"ds_read_b64 v[{44+2*w}:{45+2*w}], v27 offset:{w*32}")
    A("s_waitcnt lgkmcnt(0)")
    A("v_max3_f32 v30, v44, v46, v48")
    A("v_max_f32 v30, v30, v50")
    for w in range(4): A(f"v_sub_f32 v{52+2*w}, v{44+2*w}, v30")
    for w in range(4): A(f"v_exp_f32 v{52+2*w}, v{52+2*w}")
    nop(1)
    A("v_mul_f32 v31, v45, v52")
    A("v_fmac_f32 v31, v47, v54")
    A("v_fmac_f32 v31, v49, v56")
    A("v_fmac_f32 v31, v51, v58")
    A("v_rcp_f32 v32, v31")
    A("v_log_f32 v31, v31")
    nop(1)
    for w in range(4): A(f"v_mul_f32 v{52+2*w}, v{52+2*w}, v32")
    A("v_add_f32 v30, v30, v31")
    A(f"v_and_or_b32 v83, v30, v29, s{sT8}", "log-sum-exp (24 bits) | tag")
    A("s_barrier", "B: the partial rows are in LDS")
    for w in range(4): A(f"ds_read_b128 v[{60+4*w}:{63+4*w}], v25 offset:{w*2048}")
    A("s_waitcnt lgkmcnt(3)")
    A("v_pk_mul_f32 v[76:77], v[60:61], v[52:53] op_sel_hi:[1,0]")
    A("v_pk_mul_f32 v[78:79], v[62:63], v[52:53] op_sel_hi:[1,0]")
    for w in range(1, 4):
        A(f"s_waitcnt lgkmcnt({3-w})")
        A(f"v_pk_fma_f32 v[76:77], v[{60+4*w}:{61+4*w}], v[{52+2*w}:{53+2*w}], v[76:77] op_sel_hi:[1,0,1]")
        A(f"v_pk_fma_f32 v[78:79], v[{62+4*w}:{63+4*w}], v[{52+2*w}:{53+2*w}], v[78:79] op_sel_hi:[1,0,1]")
    C("four values of 24 bits in three words")
    A("v_perm_b32 v80, v76, v79, s56")
    A("v_perm_b32 v81, v77, v79, s57")
    A("v_perm_b32 v82, v78, v79, s58")
    A(f"global_store_dwordx4 v28, v[80:83], {WS} sc1")
    C("bring the R2 lines this workgroup will write on chip")
    A("s_mov_b32 exec_lo, 0x01010101")
    A("s_mov_b32 exec_hi, 0x01010101")
    A(f"global_load_dword v35, v34, {WS}")
    A("s_mov_b64 exec, -1")
    A("s_waitcnt vmcnt(1)")
    A("s_barrier", "C: the publishing stores are complete")
    A("s_waitcnt vmcnt(0)")
    A("s_endpgm")

    lab("L_cons")
    A("v_lshrrev_b32 v7, 4, v0", "g")
    A("v_and_b32 v21, 15, v0")
    A("v_and_b32 v22, 3, v0")
    A("v_bfe_u32 v23, v0, 2, 2")
    A("s_cmp_lg_u32 s3, 0")
    A("s_cbranch_scc1 L_noq")
    C("wave 0 fetches x: lane (g, step tq, batch) holds 8 values of k-step 4u+tq")
    A(f"s_lshr_b32 s43, s{sB}, 1")
    A("s_lshl_b32 s43, s43, 9")
    A("v_lshlrev_b32 v25, 10, v22")
    A("v_lshl_add_u32 v25, v23, 6, v25")
    A("v_lshl_add_u32 v25, v7, 4, v25")
    A("v_add_u32 v25, s43, v25")
    A("s_waitcnt lgkmcnt(0)")
    for u in range(2):
        A(f"global_load_dwordx4 v[{44+4*u}:{47+4*u}], v25, s[{sX}:{sX+1}] offset:{u*256}")
    A("s_branch L_st")
    lab("L_noq")
    A("s_cmp_lg_u32 s3, 1")
    A("s_cbranch_scc1 L_st")
    C("wave 1 of split 0 clears its pair's work counter; the workgroup publishes its q part only after that")
    A(f"s_cmp_lg_u32 s{sSPL}, 0")
    A("s_cbranch_scc1 L_st")
    A(f"s_lshl_b32 s42, s{sPAIR}, 10")
    A(f"s_add_u32 s42, s42, {CTOFF}")
    A("v_lshl_add_u32 v26, v0, 2, s42")
    A("v_mov_b32 v80, 0")
    A("s_waitcnt lgkmcnt(0)")
    A("s_mov_b32 exec_hi, 0")
    A(f"global_store_dword v26, v80, {WS} sc1")
    A("s_mov_b64 exec, -1")
    lab("L_st")
    A("s_waitcnt lgkmcnt(0)")
    A(f"s_load_dword s{sTAG}, {WS}, {EPO}")
    C("K fragment addresses: key*256 + ((t ^ (key>>2))*64) + ((g ^ (key&3))*16) + 4096*(wave&1)")
    A("s_and_b32 s43, s3, 1")
    A("s_lshl_b32 s43, s43, 12")
    A("v_xor_b32 v24, v7, v22")
    A("v_lshlrev_b32 v24, 4, v24")
    A("v_lshl_add_u32 v24, v21, 8, v24")
    A("v_add_u32 v24, s43, v24")
    for t in range(4):
        A(f"v_xor_b32 v25, {t}, v23")
        A(f"v_lshl_add_u32 v{2+t}, v25, 6, v24")
    C("V fragment address: g*1024 + (l&15)*16 + 4096*(wave&1)")
    A("v_lshlrev_b32 v6, 10, v7")
    A("v_lshl_add_u32 v6, v21, 4, v6")
    A("v_add_u32 v6, s43, v6")
    C("selector masks: lane jj keeps element jj of its four k slots")
    A("v_mov_b32 v24, 0xffff")
    A("v_mov_b32 v25, 0xffff0000")
    A("v_mov_b32 v13, 0")
    A("v_mov_b32 v14, 0")
    A("v_cmp_eq_u32 vcc, 0, v22"); nop(2); A("v_cndmask_b32 v13, v13, v24, vcc")
    A("v_cmp_eq_u32 vcc, 1, v22"); nop(2); A("v_cndmask_b32 v13, v13, v25, vcc")
    A("v_cmp_eq_u32 vcc, 2, v22"); nop(2); A("v_cndmask_b32 v14, v14, v24, vcc")
    A("v_cmp_eq_u32 vcc, 3, v22"); nop(2); A("v_cndmask_b32 v14, v14, v25, vcc")
    A("v_mov_b32 v15, 0xff800000", "running max")
    A("v_mov_b32 v16, 0xff800000", "running max * scale * log2(e)")
    A("v_mov_b32 v17, 0", "running sum")
    A("v_mov_b32 v18, 1")
    A(f"v_mov_b32 v19, {FL}")
    for r in range(88, 96): A(f"v_mov_b32 v{r}, 0")
    A(f"s_mov_b32 s{sCS}, {f2u(cs):#x}", "128^-0.5 * log2(e)")
    A("s_waitcnt lgkmcnt(0)")
    A(f"s_add_u32 s{sTAG}, s{sTAG}, 1")
    A(f"s_and_b32 s{sT8}, s{sTAG}, 0xff")
    A("s_cmp_eq_u32 s3, 0")
    A("s_cbranch_scc1 L_qprod")
    A("s_cmp_lg_u32 s3, 1")
    A("s_cbranch_scc1 L_qgather")
    A("s_waitcnt vmcnt(0)")
    A(f"ds_write_b32 v19, v18 offset:{PWF-FL}")
    A("s_branch L_qgather")
    lab("L_qprod")
    C("---- wave 0: partial q = x[:, 256k:256k+256] @ wq[256k:256k+256, 32 columns] for all four batches")
    A("v_lshl_add_u32 v24, v7, 3, v23")
    A("v_lshlrev_b32 v24, 6, v24")
    A("v_lshl_add_u32 v24, v22, 3, v24")
    A(f"v_add_u32 v24, {WST}, v24")
    def acc(ct, tq): return 64 + 16*ct + 4*tq
    def mf(pair):
        for t in (2*pair, 2*pair+1):
            for ct in range(2):
                r = 112 + 8*t + 4*ct
                d = acc(ct, t & 3)
                cin = "0" if t < 4 else f"v[{d}:{d+3}]"
                A(f"v_mfma_f32_16x16x32_bf16 v[{d}:{d+3}], v[{r}:{r+3}], v[{44+4*(t>>2)}:{47+4*(t>>2)}], {cin}")
    A(f"s_mov_b32 s44, {spin}")
    lds_wait("L_wqw", 0, "s_cmp_ge_u32", 2)
    for pair in range(4):
        if pair == 1: A("s_waitcnt vmcnt(0)")
        for t in (2*pair, 2*pair+1):
            for ct in range(2):
                r = 112 + 8*t + 4*ct
                A(f"ds_read_b64_tr_b16 v[{r}:{r+1}], v24 offset:{t*2048 + ct*32}")
                A(f"ds_read_b64_tr_b16 v[{r+2}:{r+3}], v24 offset:{t*2048 + ct*32 + 256}")
        if pair:
            A("s_waitcnt lgkmcnt(8)")
            mf(pair - 1)
    A("s_waitcnt lgkmcnt(0)")
    mf(3)
    C("q line: ((batch*8 + kv head)*2 + (b>>1))*16 + 2*s + (b&1)")
    A("v_lshlrev_b32 v25, 15, v22")
    A("v_lshl_add_u32 v25, v23, 6, v25")
    A("v_lshl_add_u32 v25, v7, 4, v25")
    A(f"s_lshl_b32 s41, s{sHKV}, 12")
    A(f"s_lshr_b32 s42, s{sB}, 1")
    A("s_lshl_b32 s42, s42, 11")
    A("s_add_u32 s41, s41, s42")
    A(f"s_lshl_b32 s42, s{sSPL}, 8")
    A("s_add_u32 s41, s41, s42")
    A(f"s_and_b32 s42, s{sB}, 1")
    A("s_lshl_b32 s42, s42, 7")
    A("s_add_u32 s41, s41, s42")
    A(f"s_add_u32 s41, s41, {QOFF}")
    A("v_add_u32 v25, s41, v25")
    A("v_mov_b32 v27, 0xffffff00")
    for (src, own, sh, bm) in ((acc(0,1), acc(0,0), "row_shl:4", 1), (acc(1,0), acc(1,1), "row_shr:4", 2),
                               (acc(0,2), 60, "row_shl:8", 1), (acc(1,2), 60, "row_shl:4", 2),
                               (acc(0,3), 60, "row_shl:12", 1), (acc(1,3), 60, "row_shl:8", 2)):
        for r in range(4):
            A(f"v_add_f32_dpp v{60+r}, v{src+r}, v{own+r} {sh} row_mask:0xf bank_mask:{bm:#x}")
    for r in range(88, 96): A(f"v_mov_b32 v{r}, 0")
    for r in range(4): A(f"v_and_or_b32 v{60+r}, v{60+r}, v27, s{sT8}")
    A(f"s_mov_b32 s44, {spin}")
    lds_wait("L_pww", PWF-FL, "s_cmp_lg_u32", 0)
    A("s_mov_b32 exec_lo, 0x00ff00ff")
    A("s_mov_b32 exec_hi, 0x00ff00ff")
    A(f"global_store_dwordx4 v25, v[60:63], {WS} sc1")
    A("s_mov_b64 exec, -1")
    lab("L_qgather")
    C("---- wave w adds the two halves of head w's q, rounds to bf16 and shares it through LDS")
    A("v_and_b32 v25, 31, v0")
    A("v_lshlrev_b32 v24, 4, v25")
    A("v_lshrrev_b32 v26, 5, v0")
    A("v_lshl_add_u32 v24, v26, 11, v24")
    A(f"s_lshl_b32 s41, s{sPAIR}, 12")
    A("s_lshl_b32 s42, s3, 9")
    A("s_add_u32 s41, s41, s42")
    A(f"s_add_u32 s41, s41, {QOFF}")
    A("v_add_u32 v148, s41, v24")
    A("s_lshl_b32 s42, s3, 8")
    A(f"s_add_u32 s42, s42, {QB}")
    A("v_lshl_add_u32 v149, v25, 3, s42")
    C("---- addresses of the final phase")
    vOSC, vMLW, vH1O, vS2W, vS2R, vR2P, vH2A, vH2B, vOUT, vMSK, vWO = range(112, 123)
    A(f"s_lshl_b32 s{sHEAD}, s{sHKV}, 2")
    A(f"s_lshr_b32 s45, s{sSPL}, 1")
    A(f"s_add_u32 s{sHEAD}, s{sHEAD}, s45", "head = kv head*4 + (s>>1)")
    A(f"s_and_b32 s{sHALF}, s{sSPL}, 1", "half of its 128 rows")
    A("v_lshlrev_b32 v20, 4, v0")
    A("s_lshl_b32 s43, s3, 11")
    A(f"v_add_u32 v{vS2W}, s43, v20")
    A(f"v_add_u32 v{vOSC}, {WST}, v{vS2W}")
    A("s_lshl_b32 s43, s3, 5")
    A(f"s_add_u32 s43, s43, {WST+8192}")
    A(f"v_lshl_add_u32 v{vMLW}, v23, 3, s43")
    A("s_and_b32 s43, s3, 1")
    A("s_lshl_b32 s43, s43, 1")
    vec_coords("s43")
    A(f"v_mov_b32 v{vS2R}, v25")
    r2_addr(vR2P)
    C("R1 reads: line (head*4 + g)*32 + p, g = 2*half + (w>>1), p = batch*8 + jj (+4); 64-byte half w&1, piece l>>4")
    A("v_lshl_add_u32 v24, v23, 3, v22")
    A("v_lshlrev_b32 v24, 7, v24")
    A("v_lshl_add_u32 v24, v7, 4, v24")
    A(f"s_lshl_b32 s41, s{sHEAD}, 2")
    A(f"s_lshl_b32 s45, s{sHALF}, 1")
    A("s_add_u32 s41, s41, s45")
    A("s_lshr_b32 s45, s3, 1")
    A("s_add_u32 s41, s41, s45")
    A("s_lshl_b32 s46, s41, 5")
    A("s_lshl_b32 s41, s41, 12")
    A("s_and_b32 s45, s3, 1")
    A("s_lshl_b32 s43, s45, 2")
    A("s_add_u32 s46, s46, s43")
    A("s_lshl_b32 s45, s45, 6")
    A("s_add_u32 s41, s41, s45")
    A(f"s_add_u32 s41, s41, {R1OFF}")
    A(f"v_add_u32 v{vH1O}, s41, v24")
    C("wo rows head*128 + 32*g + 8*tau + 4*(w&1) + (l>>4), columns 128*b + 8*(l&15)")
    A("s_lshl_b32 s46, s46, 10")
    A(f"s_lshl_b32 s45, s{sB}, 8")
    A("s_add_u32 s46, s46, s45")
    A(f"v_lshlrev_b32 v{vWO}, 10, v7")
    A(f"v_lshl_add_u32 v{vWO}, v21, 4, v{vWO}")
    A(f"v_add_u32 v{vWO}, s46, v{vWO}")
    C("R2 reads: 64 lines of region s46 = (column block, batch, g), 32 bytes b of each")
    A("v_lshrrev_b32 v24, 1, v0")
    A("v_lshlrev_b32 v24, 7, v24")
    A("v_and_b32 v25, 1, v0")
    A("v_lshl_add_u32 v24, v25, 4, v24")
    A("s_and_b32 s41, s2, 31")
    A("s_lshl_b32 s41, s41, 1")
    A("s_bfe_u32 s45, s2, 0x10005")
    A("s_add_u32 s46, s41, s45")
    A("s_lshl_b32 s41, s46, 13")
    A(f"s_lshl_b32 s45, s{sB}, 5")
    A("s_add_u32 s41, s41, s45")
    A(f"s_add_u32 s41, s41, {R2OFF}")
    A(f"v_add_u32 v{vH2A}, s41, v24")
    A(f"v_add_u32 v{vH2B}, 0x1000, v{vH2A}")
    C("output columns 128*block + 32*g + 8*r + 2*b, r = [0,2,1,3][l>>4]")
    A("s_bfe_u32 s41, s46, 0x20002")
    A("s_lshl_b32 s41, s41, 10")
    A("s_bfe_u32 s45, s46, 0x20004")
    A("s_lshl_b32 s45, s45, 8")
    A("s_add_u32 s41, s41, s45")
    A("s_and_b32 s45, s46, 3")
    A("s_lshl_b32 s45, s45, 6")
    A("s_add_u32 s41, s41, s45")
    A(f"s_lshl_b32 s45, s{sB}, 2")
    A("s_add_u32 s41, s41, s45")
    A("v_and_b32 v24, 1, v7")
    A("v_lshlrev_b32 v24, 5, v24")
    A("v_lshrrev_b32 v25, 1, v7")
    A("v_lshl_add_u32 v24, v25, 4, v24")
    A(f"v_add_u32 v{vOUT}, s41, v24")
    A(f"v_mov_b32 v{vMSK}, 0xffffff00")
    A("s_mov_b32 s57, 0x0c04000c")
    A("s_mov_b32 s58, 0x04020100")
    A(f"s_mov_b32 s44, {spin}")
    C("start looking for q once a few blocks have landed")
    lds_wait("L_qdel", 0, "s_cmp_ge_u32", qdelay)
    def poll(lbl, loads, tagged):
        C("load until every piece carries this launch's tag; lanes that are served stop loading")
        lab(lbl)
        for ld in loads: A(ld)
        A("s_sub_u32 s44, s44, 1")
        A(f"s_cbranch_scc1 {lbl}_x")
        A("s_waitcnt vmcnt(0)")
        t = 68
        for j, r in enumerate(tagged): A(f"v_xor_b32 v{t+j}, s{sT8}, v{r}")
        if len(tagged) == 8:
            A(f"v_or3_b32 v{t}, v{t}, v{t+1}, v{t+2}")
            A(f"v_or3_b32 v{t+3}, v{t+3}, v{t+4}, v{t+5}")
            A(f"v_or3_b32 v{t}, v{t}, v{t+6}, v{t+7}")
            A(f"v_or_b32 v{t}, v{t}, v{t+3}")
        elif len(tagged) == 4:
            A(f"v_or3_b32 v{t}, v{t}, v{t+1}, v{t+2}")
            A(f"v_or_b32 v{t}, v{t}, v{t+3}")
        else:
            A(f"v_or_b32 v{t}, v{t}, v{t+1}")
        A(f"v_and_b32 v{t}, 0xff, v{t}")
        A(f"v_cmp_ne_u32 vcc, 0, v{t}")
        if len(tagged) >= 4:
            A("s_and_b64 exec, exec, vcc")
        else:
            C("one tag byte per piece: the four lanes that read one writer's 64 bytes are accepted together")
            A("s_or_b32 s45, vcc_lo, vcc_hi")
            A("s_lshr_b32 s46, s45, 16")
            A("s_or_b32 s45, s45, s46")
            A("s_pack_ll_b32_b16 s46, s45, s45")
            A("s_mov_b32 s47, s46")
            A("s_and_b64 exec, exec, s[46:47]")
        A(f"s_cbranch_scc1 {lbl}")
        lab(f"{lbl}_x")
        A("s_mov_b64 exec, -1")
        A("s_waitcnt vmcnt(0)")
    poll("L_qpoll", [f"global_load_dwordx4 v[44:47], v148, {WS} sc1"], list(range(44, 48)))
    for r in range(4): A(f"v_mov_b32 v{48+r}, v{44+r}")
    for r in range(4): A(f"v_permlane32_swap_b32 v{44+r}, v{48+r}")
    for r in range(4): A(f"v_add_f32 v{44+r}, v{44+r}, v{48+r}")
    A("v_cvt_pk_bf16_f32 v44, v44, v45")
    A("v_cvt_pk_bf16_f32 v45, v46, v47")
    A("ds_write_b64 v149, v[44:45]")
    A("v_lshlrev_b32 v24, 8, v23")
    A("v_lshl_add_u32 v24, v7, 4, v24")
    A(f"v_add_u32 v24, {QB}, v24")
    A("s_mov_b64 exec, 1")
    A(f"ds_add_u32 v19, v18 offset:{QCNT-FL}")
    A("s_mov_b64 exec, -1")
    lds_wait("L_qw", QCNT-FL, "s_cmp_ge_u32", 4)
    for t in range(4): A(f"ds_read_b128 v[{28+4*t}:{31+4*t}], v24 offset:{t*64}")
    C("---- main loop: waves 0,1 take even blocks, waves 2,3 odd ones, 16 keys each")
    A("s_lshr_b32 s47, s3, 1", "block m")
    A("s_lshl_b32 s48, s47, 14", "LDS offset of its K rows")
    A("s_add_u32 s39, s47, 2", "READY must exceed this")
    A("s_mov_b32 s49, 0", "parts landed, as last seen")
    A("s_mov_b32 s55, 0", "raw READY word")
    lab("L_blk")
    for t in range(4): A(f"v_add_u32 v{8+t}, s48, v{2+t}")
    A("s_add_u32 s50, s48, 16384")
    A(f"s_and_b32 s50, s50, {RING-1}")
    A("s_lshr_b32 s54, s50, 11")
    A("s_add_u32 s50, s50, 8192")
    A("v_add_u32 v12, s50, v6")
    A("s_cmp_gt_u32 s49, s39")
    A("s_cbranch_scc1 L_kok")
    A(f"s_mov_b32 s44, {spin}")
    lab("L_kpoll")
    A("s_lshr_b32 s55, s55, 16")
    A("s_sub_u32 s55, s55, 1", "number of blocks, or -1 while unknown")
    A("s_cmp_ge_u32 s47, s55")
    A("s_cbranch_scc1 L_loopend")
    A("ds_read_b32 v20, v19")
    A("s_sub_u32 s44, s44, 1")
    A("s_cbranch_scc1 L_loopend")
    A("s_waitcnt lgkmcnt(0)")
    A("v_readfirstlane_b32 s55, v20")
    A("s_and_b32 s49, s55, 0xffff")
    A("s_cmp_gt_u32 s49, s39")
    A("s_cbranch_scc0 L_kpoll")
    lab("L_kok")
    for t in range(4): A(f"ds_read_b128 v[{44+4*t}:{47+4*t}], v{8+t}")
    A("s_lshr_b32 s51, s48, 11")
    A("s_lshl_b32 s39, s47, 1")
    A("s_add_u32 s39, s39, 4", "READY must exceed 2m+4 for V")
    A("v_add_u32 v21, s51, v19")
    A("v_add_u32 v123, s54, v19")
    for t in range(4):
        A(f"s_waitcnt lgkmcnt({3-t})")
        cin = "0" if t == 0 else "v[76:79]"
        A(f"v_mfma_f32_16x16x32_bf16 v[76:79], v[{44+4*t}:{47+4*t}], v[{28+4*t}:{31+4*t}], {cin}")
    A("s_mov_b64 exec, 1")
    A("ds_add_u32 v21, v18 offset:8", "release the K half")
    A("s_mov_b64 exec, -1")
    A("s_cmp_gt_u32 s49, s39")
    A("s_cbranch_scc1 L_vok")
    nop(3)
    A("v_max3_f32 v20, v76, v77, v78")
    A("v_max_f32 v20, v20, v79")
    A("v_cmp_gt_f32 vcc, v20, v15")
    A("s_cbranch_vccz L_nomax1")
    A("s_mov_b32 s52, 1")
    A("s_branch L_newmax")
    lab("L_nomax1")
    def softmax():
        for r in range(4): A(f"v_fma_f32 v{76+r}, v{76+r}, s{sCS}, -v16")
        for r in range(4): A(f"v_exp_f32 v{76+r}, v{76+r}")
        nop(1)
        for r in range(4): A(f"v_cvt_pk_bf16_f32 v{24+r}, v{76+r}, v{76+r}")
        A("v_add_f32 v76, v76, v77")
        A("v_add_f32 v78, v78, v79")
        for r in range(4):
            A(f"v_and_b32 v{80+2*r}, v{24+r}, v13")
            A(f"v_and_b32 v{81+2*r}, v{24+r}, v14")
        A("v_add_f32 v76, v76, v78")
        A("v_add_f32 v17, v17, v76")
    def vreads():
        for tau in range(4): A(f"ds_read_b128 v[{60+4*tau}:{63+4*tau}], v12 offset:{tau*256}")
    def pv():
        for tau in range(4):
            A(f"s_waitcnt lgkmcnt({3-tau})")
            A(f"v_mfma_f32_16x16x16_bf16 v[88:91], v[{60+4*tau}:{61+4*tau}], v[{80+2*tau}:{81+2*tau}], v[88:91]")
            A(f"v_mfma_f32_16x16x16_bf16 v[92:95], v[{62+4*tau}:{63+4*tau}], v[{80+2*tau}:{81+2*tau}], v[92:95]")
    softmax()
    A(f"s_mov_b32 s44, {spin}")
    A("s_add_u32 s50, s47, 2")
    A("s_mov_b32 s38, 1")
    lab("L_vpoll")
    A("s_lshr_b32 s55, s55, 16")
    A("s_cmp_eq_u32 s55, s50", "last block: barrier A signals its V rows")
    A("s_cbranch_scc1 L_fin1")
    A("ds_read_b32 v20, v19")
    A("s_sub_u32 s44, s44, 1")
    A("s_cbranch_scc1 L_vok1")
    A("s_waitcnt lgkmcnt(0)")
    A("v_readfirstlane_b32 s55, v20")
    A("s_and_b32 s49, s55, 0xffff")
    A("s_cmp_gt_u32 s49, s39")
    A("s_cbranch_scc0 L_vpoll")
    lab("L_vok1")
    vreads()
    A("s_branch L_pv")
    lab("L_vok")
    vreads()
    A("v_max3_f32 v20, v76, v77, v78")
    A("v_max_f32 v20, v20, v79")
    A("v_cmp_gt_f32 vcc, v20, v15")
    A("s_cbranch_vccz L_nomax2")
    A("s_mov_b32 s52, 0")
    lab("L_newmax")
    C("the running max rose for some head: take the max over the 16 keys and rescale")
    A("v_mov_b32 v24, v20")
    nop(2)
    A("v_permlane16_swap_b32 v20, v24")
    nop(1)
    A("v_max_f32 v20, v20, v24")
    A("v_mov_b32 v24, v20")
    nop(2)
    A("v_permlane32_swap_b32 v20, v24")
    nop(1)
    A("v_max3_f32 v20, v20, v24, v15")
    A("v_sub_f32 v24, v15, v20")
    A(f"v_mul_f32 v24, s{sCS}, v24")
    A("v_exp_f32 v24, v24")
    A("v_mov_b32 v15, v20")
    A(f"v_mul_f32 v16, s{sCS}, v20")
    A("v_mul_f32 v17, v17, v24")
    for r in range(88, 96): A(f"v_mul_f32 v{r}, v{r}, v24")
    A("s_cmp_eq_u32 s52, 1")
    A("s_cbranch_scc1 L_nomax1")
    lab("L_nomax2")
    softmax()
    lab("L_pv")
    A("s_add_u32 s47, s47, 2")
    A("s_add_u32 s39, s39, 1", "2(m+2)+1 for the next K")
    A("s_add_u32 s48, s48, 32768")
    A(f"s_and_b32 s48, s48, {RING-1}")
    pv()
    A("s_mov_b64 exec, 1")
    A("ds_add_u32 v123, v18 offset:12", "release the V half")
    A("s_mov_b64 exec, -1")
    A("s_branch L_blk")
    lab("L_loopend")
    A("s_mov_b32 s38, 0")
    A(f"ds_write_b128 v{vOSC}, v[88:91]")
    A(f"ds_write_b128 v{vOSC}, v[92:95] offset:1024")
    lab("L_fin1")
    C("---- hand the four waves' partial results to the publishing waves through LDS")
    A("v_mov_b32 v24, v17")
    A(f"s_mov_b32 s44, {spin}")
    A("s_cmp_eq_u32 s38, 0")
    A("v_permlane16_swap_b32 v17, v24")
    nop(1)
    A("v_add_f32 v17, v17, v24")
    A("v_mov_b32 v24, v17")
    nop(2)
    A("v_permlane32_swap_b32 v17, v24")
    nop(1)
    A("v_add_f32 v17, v17, v24")
    A(f"ds_write_b64 v{vMLW}, v[16:17]")
    C("this wave's 16 rows x 128 columns of wo travel while the partial results are exchanged")
    for tau in range(4):
        if tau: A(f"v_add_u32 v{vWO}, 0x2000, v{vWO}")
        A(f"global_load_dwordx4 v[{96+4*tau}:{99+4*tau}], v{vWO}, s[{sWO}:{sWO+1}] nt")
    A("s_waitcnt lgkmcnt(0)")
    A("s_barrier", "A")
    A("s_cbranch_scc1 L_fin2")
    vreads()
    pv()
    nop(7)
    A(f"ds_write_b128 v{vOSC}, v[88:91]")
    A(f"ds_write_b128 v{vOSC}, v[92:95] offset:1024")
    A("s_waitcnt lgkmcnt(0)")
    lab("L_fin2")
    A("s_barrier", "B")
    A("s_barrier", "C")
    C("---- hand-off R1: 8 splits x 4 batches of this wave's 16 rows of one head")
    poll("L_h1poll", [f"global_load_dwordx4 v[52:55], v{vH1O}, {WS} sc1",
                      f"global_load_dwordx4 v[56:59], v{vH1O}, {WS} offset:512 sc1"], [55, 59])
    A("v_max_f32 v20, v55, v59")
    A("v_perm_b32 v44, v53, v52, s57")
    A("v_perm_b32 v45, v57, v56, s57")
    A("v_max_f32_dpp v20, v20, v20 quad_perm:[1,0,3,2] row_mask:0xf bank_mask:0xf")
    A("v_perm_b32 v44, v54, v44, s58")
    A("v_perm_b32 v45, v58, v45, s58")
    A("v_max_f32_dpp v20, v20, v20 quad_perm:[2,3,0,1] row_mask:0xf bank_mask:0xf")
    A("v_sub_f32 v46, v55, v20")
    A("v_sub_f32 v47, v59, v20")
    A("v_exp_f32 v46, v46")
    A("v_exp_f32 v47, v47")
    A(f"s_mov_b32 s44, {spin}")
    A("v_mul_f32 v60, v52, v46")
    A("v_add_f32 v20, v46, v47")
    A("v_mul_f32 v61, v53, v46")
    A("v_mul_f32 v62, v54, v46")
    A("v_mul_f32 v63, v44, v46")
    A("v_add_f32_dpp v20, v20, v20 quad_perm:[1,0,3,2] row_mask:0xf bank_mask:0xf")
    A("v_fmac_f32 v60, v56, v47")
    A("v_fmac_f32 v61, v57, v47")
    A("v_add_f32_dpp v20, v20, v20 quad_perm:[2,3,0,1] row_mask:0xf bank_mask:0xf")
    A("v_fmac_f32 v62, v58, v47")
    A("v_fmac_f32 v63, v45, v47")
    A("v_rcp_f32 v20, v20")
    for r in range(4): A(f"v_add_f32_dpp v{60+r}, v{60+r}, v{60+r} quad_perm:[1,0,3,2] row_mask:0xf bank_mask:0xf")
    for r in range(4): A(f"v_add_f32_dpp v{60+r}, v{60+r}, v{60+r} quad_perm:[2,3,0,1] row_mask:0xf bank_mask:0xf")
    for r in range(4): A(f"v_mul_f32 v{60+r}, v{60+r}, v20")
    for r in range(4): A(f"v_cvt_pk_bf16_f32 v{60+r}, v{60+r}, v{60+r}")
    for r in range(4):
        A(f"v_and_b32 v{80+2*r}, v{60+r}, v13")
        A(f"v_and_b32 v{81+2*r}, v{60+r}, v14")
        if r:
            tau = r - 1
            c0 = "0" if tau == 0 else "v[88:91]"
            c1 = "0" if tau == 0 else "v[92:95]"
            A(f"v_mfma_f32_16x16x16_bf16 v[88:91], v[{96+4*tau}:{97+4*tau}], v[{80+2*tau}:{81+2*tau}], {c0}")
            A(f"v_mfma_f32_16x16x16_bf16 v[92:95], v[{98+4*tau}:{99+4*tau}], v[{80+2*tau}:{81+2*tau}], {c1}")
    A("v_mfma_f32_16x16x16_bf16 v[88:91], v[108:109], v[86:87], v[88:91]")
    A("v_mfma_f32_16x16x16_bf16 v[92:95], v[110:111], v[86:87], v[92:95]")
    C("add the four waves' products through LDS (the start of the ring is free by now)")
    A("s_cmp_ge_u32 s3, 2")
    nop(6)
    A(f"ds_write_b128 v{vS2W}, v[88:91]")
    A(f"ds_write_b128 v{vS2W}, v[92:95] offset:1024")
    A("s_waitcnt lgkmcnt(0)")
    A("s_barrier", "D")
    A("s_cbranch_scc1 L_h2")
    for w in range(4): A(f"ds_read_b128 v[{60+4*w}:{63+4*w}], v{vS2R} offset:{w*2048}")
    A("s_waitcnt lgkmcnt(2)")
    A("v_pk_add_f32 v[60:61], v[60:61], v[64:65]")
    A("v_pk_add_f32 v[62:63], v[62:63], v[66:67]")
    A("s_waitcnt lgkmcnt(0)")
    A("v_pk_add_f32 v[68:69], v[68:69], v[72:73]")
    A("v_pk_add_f32 v[70:71], v[70:71], v[74:75]")
    A("v_pk_add_f32 v[60:61], v[60:61], v[68:69]")
    A("v_pk_add_f32 v[62:63], v[62:63], v[70:71]")
    for r in range(4): A(f"v_and_or_b32 v{60+r}, v{60+r}, v{vMSK}, s{sT8}")
    A(f"global_store_dwordx4 v{vR2P}, v[60:63], {WS} sc1")
    A("s_waitcnt vmcnt(0)")
    A("s_barrier", "E: the publishing stores are complete")
    A("s_endpgm")
    lab("L_h2")
    A("s_cmp_eq_u32 s3, 3")
    A("s_barrier", "E")
    A("s_cbranch_scc1 L_fin")
    C("---- hand-off R2: wave 2 adds 64 row-slices for 8 outputs of one batch")
    poll("L_h2poll", [f"global_load_dwordx4 v[52:55], v{vH2A}, {WS} sc1",
                      f"global_load_dwordx4 v[56:59], v{vH2B}, {WS} sc1"], list(range(52, 60)))
    A("v_pk_add_f32 v[52:53], v[52:53], v[56:57]")
    A("v_pk_add_f32 v[54:55], v[54:55], v[58:59]")
    nop(1)
    A("v_permlane32_swap_b32 v52, v53")
    A("v_permlane32_swap_b32 v54, v55")
    nop(1)
    A("v_add_f32 v52, v52, v53")
    A("v_add_f32 v54, v54, v55")
    nop(2)
    A("v_permlane16_swap_b32 v52, v54")
    nop(1)
    A("v_add_f32 v52, v52, v54")
    for dpp in ("quad_perm:[2,3,0,1]", "row_ror:4", "row_ror:8"):
        nop(2)
        A(f"v_add_f32_dpp v52, v52, v52 {dpp} row_mask:0xf bank_mask:0xf")
    A("s_mov_b32 s46, 0x00010001")
    A("s_mov_b32 s47, 0x00010001")
    A("v_mov_b32_dpp v53, v52 quad_perm:[1,0,3,2] row_mask:0xf bank_mask:0xf")
    A("s_mov_b64 exec, s[46:47]")
    A("v_cvt_pk_bf16_f32 v52, v52, v53")
    A(f"global_store_dword v{vOUT}, v52, s[{sOUT}:{sOUT+1}]")
    A("s_cmp_lg_u32 s2, 0")
    A("s_cbranch_scc1 L_fin")
    C("every workgroup has read the old tag and published with the new one by now: store it for the next launch")
    A("s_mov_b64 exec, 1")
    A(f"v_mov_b32 v25, s{sTAG}")
    A("v_mov_b32 v24, 0")
    A(f"global_store_dword v24, v25, {WS} offset:{EPO}")
    lab("L_fin")
    A("s_endpgm")

    lab("L_claimer")
    A("s_waitcnt lgkmcnt(0)")
    A(f"s_load_dword s{sTAG}, {WS}, {EPO}")
    A("s_mov_b32 s48, 2")
    vec_coords("s48")
    r1_addr(28)
    A(f"s_lshl_b32 s42, s{sPAIR}, 10")
    A(f"s_add_u32 s42, s42, {CTOFF}")
    A(f"s_add_u32 s28, s{sWS}, s42")
    A(f"s_addc_u32 s29, s{sWS+1}, 0")
    A("s_mov_b64 s[30:31], 0", "counters as last seen")
    A(f"s_lshl_b32 s38, s{sSPL}, 3")
    A("s_sub_u32 s39, 64, s38")
    A(f"v_mov_b32 v4, {FL}")
    A(f"v_mov_b32 v5, {MBOX}")
    A(f"s_mov_b32 s43, {2*S - cah}")
    A("s_mov_b64 exec, 1")
    A(f"s_mov_b32 s44, {spin}")
    lab("L_cl")
    A("ds_read_b32 v6, v4")
    A("s_sub_u32 s44, s44, 1")
    A("s_cbranch_scc1 L_cl_x")
    A("s_waitcnt lgkmcnt(0)")
    A("v_readfirstlane_b32 s45, v6")
    A("s_and_b32 s45, s45, 0xffff")
    A("s_cmp_ge_u32 s45, s43")
    A("s_cbranch_scc0 L_cl")
    C("eight 8-bit counters in one word, one per column of blocks: take from the own column first, then from the fullest")
    lab("L_pick")
    A("s_lshr_b64 s[46:47], s[30:31], s38")
    A("s_lshl_b64 s[48:49], s[30:31], s39")
    A("s_cmp_eq_u32 s38, 0")
    A("s_cselect_b64 s[48:49], 0, s[48:49]")
    A("s_or_b64 s[46:47], s[46:47], s[48:49]", "rotated: field 0 = own column")
    A("s_and_b32 s45, s46, 0xff")
    A("s_mov_b32 s50, 0")
    A(f"s_cmp_lt_u32 s45, {LIM}")
    A("s_cbranch_scc1 L_take")
    A(f"s_mov_b32 s50, {LIM << 3}")
    for j in range(1, 8):
        A(f"s_bfe_u32 s45, s{46 + j // 4}, {0x80000 + 8 * (j % 4):#x}")
        A(f"s_lshl3_add_u32 s45, s45, {j}")
        A("s_min_u32 s50, s50, s45")
    A(f"s_mov_b32 s45, {NB + 1}", "nothing left")
    A(f"s_cmp_ge_u32 s50, {LIM << 3}")
    A("s_cbranch_scc1 L_post")
    lab("L_take")
    A(f"s_add_u32 s50, s50, s{sSPL}")
    A("s_and_b32 s50, s50, 7", "column")
    A("s_lshl_b32 s51, s50, 3")
    A("s_lshl_b64 s[46:47], 1, s51")
    A("s_mov_b64 s[30:31], s[46:47]")
    A("s_atomic_add_x2 s[46:47], s[28:29], 0x0 glc")
    A("s_waitcnt lgkmcnt(0)")
    A("s_add_u32 s30, s30, s46")
    A("s_addc_u32 s31, s31, s47")
    A("s_lshr_b64 s[46:47], s[46:47], s51")
    A("s_and_b32 s45, s46, 0xff")
    A(f"s_cmp_ge_u32 s45, {LIM}")
    A("s_cbranch_scc1 L_pick")
    A("s_lshl3_add_u32 s45, s45, s50")
    A(f"s_add_u32 s45, s45, {8*S + 1}")
    lab("L_post")
    A("s_add_u32 s43, s43, 2")
    A("v_mov_b32 v7, s45")
    A("ds_write_b32 v5, v7")
    A("v_add_u32 v5, 4, v5")
    A(f"s_cmp_gt_u32 s45, {NB}")
    A("s_cbranch_scc0 L_cl")
    lab("L_cl_x")
    C("the stream is ending: bring the R1 lines this workgroup will write on chip")
    A("s_mov_b32 exec_lo, 0x01010101")
    A("s_mov_b32 exec_hi, 0x01010101")
    A("v_subrev_u32 v35, 0x8000, v28")
    A(f"global_load_dword v40, v28, {WS}")
    A(f"global_load_dword v41, v35, {WS}")
    A("s_mov_b64 exec, -1")
    A("s_branch L_publish")
    lab("L_codeend")

    src = HEAD + f"; @launch grid=(256,1,1) block=(384,1,1) lds={LDS}\n"
    src += f""".amdgcn_target "amdgcn-amd-amdhsa--gfx950"
.text
.globl {KN}
.p2align 8
.type {KN},@function
{KN}:
""" + "\n".join(L) + f"""
    s_endpgm
.section .rodata,"a"
.p2align 6
.amdhsa_kernel {KN}
  .amdhsa_next_free_vgpr 176
  .amdhsa_next_free_sgpr 64
  .amdhsa_accum_offset 176
  .amdhsa_group_segment_fixed_size 0
  .amdhsa_kernarg_size 64
  .amdhsa_user_sgpr_count 2
  .amdhsa_user_sgpr_kernarg_segment_ptr 1
  .amdhsa_system_sgpr_workgroup_id_x 1
  .amdhsa_float_denorm_mode_32 3
.end_amdhsa_kernel
"""
    return src

if __name__ == "__main__":
    kw = eval("dict(" + (sys.argv[2] if len(sys.argv) > 2 else "") + ")")
    open(sys.argv[1], "w").write(gen(**kw))
```

```python
import math, sys, struct

KN = "standalone__gqa_block_cached__decode_kernel"
HEAD = """; Kernarg layout for this problem (64 bytes, ptrs only, base s[0:1]):
;
"""

def f2u(x):
    return struct.unpack("<I", struct.pack("<f", x))[0]

def gen(depth=21, S=60, cah=4, qdelay=8, rrot=4, spin=1 << 19):
    L = []
    def A(s, c=None): L.append("    " + s + (f"{' ' * max(1, 44 - len(s))}; {c}" if c else ""))
    def lab(s): L.append(s + ":")
    def nop(n): A(f"s_nop {n-1}")
    def C(s): L.append("    ; " + s)

    RING = 128 * 1024
    NB = 512
    NBW = NB // 8
    LIM = NBW - S
    WST = RING
    FL = RING + 16384
    QCNT, PWF, MBOX = FL + 128, FL + 132, FL + 256
    QB = FL + 1024
    LDS = QB + 1024
    EPO, CTOFF, QOFF, R1OFF, R2OFF = 0, 32768, 64 << 10, 1 << 20, 3 << 19
    cs = (128 ** -0.5) * math.log2(math.e)
    assert 2 * S - cah > 18 and 8 * LIM < 190 and cah >= 2

    sX, sK, sV, sWQ, sWO, sOUT, sWS = 4, 6, 8, 10, 12, 14, 18
    WS = f"s[{sWS}:{sWS+1}]"
    sPAIR, sSPL, sB, sHKV, sTAG, sCS, sT8, sHEAD, sHALF = 32, 33, 34, 35, 36, 37, 53, 40, 42

    def lds_wait(lbl, off, cmp, n):
        lab(lbl)
        A(f"ds_read_b32 v20, v19 offset:{off}")
        A("s_sub_u32 s44, s44, 1")
        A(f"s_cbranch_scc1 {lbl}_x")
        A("s_waitcnt lgkmcnt(0)")
        A("v_readfirstlane_b32 s49, v20")
        A(f"{cmp} s49, {n}")
        A(f"s_cbranch_scc0 {lbl}")
        lab(f"{lbl}_x")
    def vec_coords(iw):
        A("v_bfe_u32 v24, v0, 3, 2", "g")
        A("v_bfe_u32 v25, v0, 2, 1", "i")
        A("v_lshrrev_b32 v26, 5, v0")
        A(f"v_add_u32 v26, {iw}, v26", "a: head (R1) or batch (R2)")
        A("v_lshlrev_b32 v25, 10, v25")
        A("v_lshl_add_u32 v25, v24, 8, v25")
        A("v_lshl_add_u32 v25, v26, 6, v25")
        A("v_and_b32 v27, 3, v0")
        A("v_lshl_add_u32 v25, v27, 4, v25", "scratch offset i*1024 + (g*16 + a*4 + jj)*16")
        A("v_and_b32 v27, 7, v0")
        A("v_lshlrev_b32 v27, 4, v27", "place inside the 128-byte line")
    def r1_addr(dst):
        C("R1 line ((kv head*4 + head)*4 + g)*32 + b*8 + s")
        A(f"v_lshl_add_u32 v{dst}, v26, 14, v27")
        A(f"v_lshl_add_u32 v{dst}, v24, 12, v{dst}")
        A(f"s_lshl_b32 s54, s{sB}, 3")
        A(f"s_add_u32 s54, s54, s{sSPL}")
        A(f"s_lshl_b32 s41, s{sHKV}, 16")
        A("s_lshl_b32 s45, s54, 7")
        A("s_add_u32 s41, s41, s45")
        A(f"s_add_u32 s41, s41, {R1OFF}")
        A(f"v_add_u32 v{dst}, s41, v{dst}")
    def r2_addr(dst):
        C("R2 line ((b*4 + batch)*4 + g)*64 + kv head*8 + s")
        A(f"v_lshl_add_u32 v{dst}, v26, 15, v27")
        A(f"v_lshl_add_u32 v{dst}, v24, 13, v{dst}")
        A(f"s_lshl_b32 s41, s{sB}, 10")
        A("s_and_b32 s45, s2, 63")
        A("s_add_u32 s41, s41, s45")
        A("s_lshl_b32 s41, s41, 7")
        A(f"s_add_u32 s41, s41, {R2OFF}")
        A(f"v_add_u32 v{dst}, s41, v{dst}")

    C("workgroups past the 256 that carry work leave at once")
    A("s_cmp_ge_u32 s2, 256")
    A("s_cbranch_scc1 L_end0")
    A("s_load_dwordx16 s[4:19], s[0:1], 0")
    A("v_lshrrev_b32 v1, 6, v0")
    A("v_and_b32 v0, 63, v0")
    A(f"s_lshr_b32 s{sPAIR}, s2, 3", "pair = b*8 + kv head")
    A("v_readfirstlane_b32 s3, v1", "wave")
    A(f"s_and_b32 s{sSPL}, s2, 7")
    A(f"s_lshr_b32 s{sB}, s2, 6")
    A(f"s_and_b32 s{sHKV}, s{sPAIR}, 7")
    A("s_cmp_eq_u32 s3, 4")
    A("s_cbranch_scc1 L_loader")
    A("s_cmp_lg_u32 s3, 5")
    A("s_cbranch_scc1 L_cons0")
    C("one load pulls the kernel's code into L2")
    A("s_getpc_b64 s[28:29]")
    lab("L_pc")
    A("v_lshlrev_b32 v2, 7, v0")
    A("v_min_u32 v2, L_codeend - L_pc - 4, v2")
    A("global_load_dword v100, v2, s[28:29]")
    A("s_barrier")
    A("s_branch L_claimer")
    lab("L_cons0")
    A("s_barrier", "the LDS flags are initialised from here on")
    A("s_branch L_cons")
    lab("L_end0")
    A("s_endpgm")

    lab("L_loader")
    A("s_setprio 3")
    C("clear the LDS flags and the block list")
    A("v_lshlrev_b32 v6, 4, v0")
    for r in range(12, 16): A(f"v_mov_b32 v{r}, 0")
    A(f"v_add_u32 v10, {FL}, v6")
    A("ds_write_b128 v10, v[12:15]")
    A(f"v_mov_b32 v10, {FL}")
    A("v_mov_b32 v11, 2")
    A("ds_write_b32 v10, v11 offset:12", "slot 0 holds no V rows in its first round")
    C("wq tile: rows 256*(b>>1) .. +256, 32 columns; lane = (row l>>2, 16-byte piece l&3)")
    A("v_lshrrev_b32 v7, 2, v0")
    A("v_and_b32 v8, 3, v0")
    A("v_lshlrev_b32 v7, 13, v7")
    A("v_lshl_add_u32 v20, v8, 4, v7")
    for k in range(1, 4): A(f"v_add_u32 v{20+k}, {16*8192 - 1024}, v{19+k}")
    A(f"s_lshr_b32 s45, s{sB}, 1")
    A("s_lshl_b32 s45, s45, 21")
    A("s_and_b32 s46, s2, 63")
    A("s_lshl_b32 s46, s46, 7")
    A("s_add_u32 s45, s45, s46")
    A("s_and_b32 s46, s2, 64")
    A("s_add_u32 s45, s45, s46")
    A("s_mov_b32 s30, 0x400000"); A("s_mov_b32 s31, 0x20000")
    A(f"s_mov_b32 m0, {WST}")
    A("s_waitcnt lgkmcnt(0)")
    A(f"s_mov_b32 s28, s{sWQ}"); A(f"s_mov_b32 s29, s{sWQ+1}")
    lab("L_wq")
    for k in range(4):
        A(f"buffer_load_dwordx4 v{20+k}, s[28:31], s45 offen offset:{k*1024} nt lds")
    A("s_add_u32 m0, m0, 4096")
    A(f"s_add_u32 s45, s45, {64*8192}")
    A(f"s_cmp_lt_u32 m0, {WST + 16384}")
    A("s_cbranch_scc1 L_wq")
    A("s_barrier")
    C("K rows land with their 16-byte pieces XORed by the row number (conflict-free fragment reads)")
    A("v_lshrrev_b32 v7, 4, v0")
    A("v_xor_b32 v7, v7, v0")
    A("v_lshlrev_b32 v2, 4, v7")
    for i in range(1, 4): A(f"v_xor_b32 v{2+i}, {64*i}, v2")
    A(f"s_lshl_b32 s40, s{sPAIR}, 22", "pair base")
    A("s_mov_b32 s42, 0", "LDS offset of the slot")
    eK, eV = 7, 15
    pK, lagK = (eK + depth) % 16, (eK + depth) // 16
    pV, lagV = (eV + depth) % 16, (eV + depth) // 16
    first = min(2 * (1 - lagK) + 2, 2 * (1 - lagV) + 3)
    A(f"s_mov_b32 s43, {first - 1}", "READY: wq tile 2, K(0) 3, K(m) 2m+2, V(m) 2m+5")
    A("v_mov_b32 v11, 0")
    A("s_mov_b32 s51, 0")
    A(f"v_mov_b32 v9, {FL}")
    A(f"s_mov_b32 s20, s{sK}"); A(f"s_mov_b32 s21, s{sK+1}")
    A("s_mov_b32 s22, 0x8000000"); A("s_mov_b32 s23, 0x20000")
    A(f"s_mov_b32 s24, s{sV}"); A(f"s_mov_b32 s25, s{sV+1}")
    A("s_mov_b32 s26, 0x8000000"); A("s_mov_b32 s27, 0x20000")
    A(f"s_mul_i32 s38, s{sPAIR}, {rrot}")
    def addr():
        C("block s46 = (row r, column c): two 4 KiB pieces 32 KiB apart; rows and columns rotated by the pair")
        A("s_lshr_b32 s47, s46, 3")
        A(f"s_add_u32 s48, s46, s{sPAIR}")
        A("s_add_u32 s47, s47, s38")
        A("s_and_b32 s48, s48, 7")
        A("s_and_b32 s47, s47, 63")
        A("s_lshl_b32 s48, s48, 12")
        A("s_lshl_b32 s47, s47, 16")
        A("s_add_u32 s44, s48, s40")
        A("s_add_u32 s44, s44, s47")
    def load(which, i, wait):
        srd = "s[20:23]" if which == 0 else "s[24:27]"
        base = "s44" if which == 0 else "s39"
        va = f"v{2+(i&3)}" if which == 0 else "v6"
        if i % 4 == 0:
            A(f"s_add_u32 m0, s42, {which*8192 + i*1024}")
            A(f"s_add_u32 s45, {base}, {(i//4)*32768}")
        if wait: A(f"s_waitcnt vmcnt({depth-1})")
        A(f"buffer_load_dwordx4 {va}, {srd}, s45 offen offset:{(i % 4) * 1024} nt lds")
    def publish():
        A("s_add_u32 s43, s43, 1")
        A("v_max_i32 v11, s43, v11")
        A("ds_write_b32 v10, v11")
    def slot_wait(sfx):
        C("both halves of the slot must have been released by their consumer waves")
        A("s_waitcnt lgkmcnt(0)")
        A("v_min_u32 v12, v12, v13")
        A(f"s_mov_b32 s52, {spin}")
        A("v_readfirstlane_b32 s50, v12")
        A("s_cmp_ge_u32 s50, s51")
        A(f"s_cbranch_scc1 L_free{sfx}")
        lab(f"L_wfree{sfx}")
        A("ds_read_b64 v[12:13], v9 offset:8")
        A("s_sub_u32 s52, s52, 1")
        A(f"s_cbranch_scc1 L_free{sfx}")
        A("s_waitcnt lgkmcnt(0)")
        A("v_min_u32 v12, v12, v13")
        nop(1)
        A("v_readfirstlane_b32 s50, v12")
        A("s_cmp_ge_u32 s50, s51")
        A(f"s_cbranch_scc0 L_wfree{sfx}")
        lab(f"L_free{sfx}")
    A(f"s_mov_b32 s46, s{sSPL}")
    addr()
    for i in range(8): load(0, i, False)
    A("s_mov_b32 s41, 1", "step")
    A("s_mov_b32 s42, 16384")
    lab("L_ld")
    A("s_mov_b32 s39, s44", "V rows of the previous block")
    A("s_lshl_b32 s46, s41, 3")
    A(f"s_add_u32 s46, s46, s{sSPL}")
    A(f"s_cmp_lt_u32 s41, {S}")
    A("s_cbranch_scc1 L_got")
    C("claimed blocks come from the block list")
    A("s_waitcnt lgkmcnt(0)")
    A("v_readfirstlane_b32 s46, v17")
    A(f"s_mov_b32 s52, {spin}")
    A("s_cmp_lg_u32 s46, 0")
    A("s_cbranch_scc1 L_mb")
    lab("L_wmb")
    A(f"ds_read_b32 v17, v16 offset:{MBOX-FL}")
    A("s_sub_u32 s52, s52, 1")
    A("s_cbranch_scc1 L_drain")
    A("s_waitcnt lgkmcnt(0)")
    A("v_readfirstlane_b32 s46, v17")
    A("s_cmp_lg_u32 s46, 0")
    A("s_cbranch_scc0 L_wmb")
    lab("L_mb")
    A(f"s_cmp_gt_u32 s46, {NB}")
    A("s_cbranch_scc1 L_drain")
    A("s_sub_u32 s46, s46, 1")
    lab("L_got")
    addr()
    slot_wait("a")
    for p in range(16):
        load(p // 8, p % 8, True)
        if p in (pK, pV): publish()
        if p == 11:
            C("read the next slot's release counters and the next block's index ahead of time")
            A("s_add_u32 s50, s42, 16384")
            A(f"s_and_b32 s50, s50, {RING-1}")
            A("s_lshr_b32 s50, s50, 11")
            A("v_add_u32 v9, s50, v10")
            A("s_add_u32 s51, s41, 1")
            A("s_lshr_b32 s51, s51, 3")
            A("s_lshl_b32 s51, s51, 1")
            A("ds_read_b64 v[12:13], v9 offset:8")
            A(f"s_sub_i32 s50, s41, {S-1}")
            A("s_max_i32 s50, s50, 0")
            A("v_lshl_add_u32 v16, s50, 2, v10")
            A(f"ds_read_b32 v17, v16 offset:{MBOX-FL}")
    A("s_add_u32 s42, s42, 16384")
    A(f"s_and_b32 s42, s42, {RING-1}")
    A("s_add_u32 s41, s41, 1")
    A("s_branch L_ld")
    lab("L_drain")
    C("last step: V rows only; the upper half of the READY word announces the number of blocks (+1)")
    A("s_add_u32 s50, s41, 1")
    A("s_lshl_b32 s50, s50, 16")
    A("s_add_u32 s43, s43, s50")
    slot_wait("b")
    A(f"s_load_dword s{sTAG}, {WS}, {EPO}")
    ev = []
    for dm in range(-3, 0):
        ev.append((2*dm + 2, 16*dm + eK)); ev.append((2*dm + 3, 16*dm + eV))
    done_val = max(2*(-1 - lagK) + 2, 2*(-1 - lagV) + 3)
    ev = [e for e in ev if e[0] > done_val]
    for i in range(8):
        load(1, i, True)
        while ev and ev[0][1] <= i - depth:
            publish(); ev.pop(0)
    A("s_mov_b32 s48, 0")
    vec_coords("s48")
    r1_addr(28)
    for val, idx in ev:
        A(f"s_waitcnt vmcnt({7 - idx})")
        publish()
    lab("L_publish")
    C("---- waves 4 and 5 merge the four partial results and publish them (normalised rows + log-sum-exp)")
    r2_addr(34)
    A(f"v_add_u32 v25, {WST}, v25")
    A("v_lshlrev_b32 v27, 3, v26")
    A(f"v_add_u32 v27, {WST+8192}, v27")
    A("v_mov_b32 v29, 0xffffff00")
    A("s_mov_b32 s56, 0x07060501")
    A("s_mov_b32 s57, 0x07060502")
    A("s_mov_b32 s58, 0x07060503")
    A("s_waitcnt lgkmcnt(0)")
    A(f"s_add_u32 s{sTAG}, s{sTAG}, 1")
    A(f"s_and_b32 s{sT8}, s{sTAG}, 0xff")
    A("s_waitcnt vmcnt(0)")
    A("s_barrier", "A: last V rows landed; maxima and sums are in LDS")
    for w in range(4): A(f"ds_read_b64 v[{44+2*w}:{45+2*w}], v27 offset:{w*32}")
    A("s_waitcnt lgkmcnt(0)")
    A("v_max3_f32 v30, v44, v46, v48")
    A("v_max_f32 v30, v30, v50")
    for w in range(4): A(f"v_sub_f32 v{52+2*w}, v{44+2*w}, v30")
    for w in range(4): A(f"v_exp_f32 v{52+2*w}, v{52+2*w}")
    nop(1)
    A("v_mul_f32 v31, v45, v52")
    A("v_fmac_f32 v31, v47, v54")
    A("v_fmac_f32 v31, v49, v56")
    A("v_fmac_f32 v31, v51, v58")
    A("v_rcp_f32 v32, v31")
    A("v_log_f32 v31, v31")
    nop(1)
    for w in range(4): A(f"v_mul_f32 v{52+2*w}, v{52+2*w}, v32")
    A("v_add_f32 v30, v30, v31")
    A(f"v_and_or_b32 v83, v30, v29, s{sT8}", "log-sum-exp (24 bits) | tag")
    A("s_barrier", "B: the partial rows are in LDS")
    for w in range(4): A(f"ds_read_b128 v[{60+4*w}:{63+4*w}], v25 offset:{w*2048}")
    A("s_waitcnt lgkmcnt(3)")
    A("v_pk_mul_f32 v[76:77], v[60:61], v[52:53] op_sel_hi:[1,0]")
    A("v_pk_mul_f32 v[78:79], v[62:63], v[52:53] op_sel_hi:[1,0]")
    for w in range(1, 4):
        A(f"s_waitcnt lgkmcnt({3-w})")
        A(f"v_pk_fma_f32 v[76:77], v[{60+4*w}:{61+4*w}], v[{52+2*w}:{53+2*w}], v[76:77] op_sel_hi:[1,0,1]")
        A(f"v_pk_fma_f32 v[78:79], v[{62+4*w}:{63+4*w}], v[{52+2*w}:{53+2*w}], v[78:79] op_sel_hi:[1,0,1]")
    C("four values of 24 bits in three words")
    A("v_perm_b32 v80, v76, v79, s56")
    A("v_perm_b32 v81, v77, v79, s57")
    A("v_perm_b32 v82, v78, v79, s58")
    A(f"global_store_dwordx4 v28, v[80:83], {WS} sc1")
    C("bring the R2 lines this workgroup will write on chip")
    A("s_mov_b32 exec_lo, 0x01010101")
    A("s_mov_b32 exec_hi, 0x01010101")
    A(f"global_load_dword v35, v34, {WS}")
    A("s_mov_b64 exec, -1")
    A("s_waitcnt vmcnt(1)")
    A("s_barrier", "C: the publishing stores are complete")
    A("s_waitcnt vmcnt(0)")
    A("s_endpgm")

    lab("L_cons")
    A("v_lshrrev_b32 v7, 4, v0", "g")
    A("v_and_b32 v21, 15, v0")
    A("v_and_b32 v22, 3, v0")
    A("v_bfe_u32 v23, v0, 2, 2")
    A("s_cmp_lg_u32 s3, 0")
    A("s_cbranch_scc1 L_noq")
    C("wave 0 fetches x: lane (g, step tq, batch) holds 8 values of k-step 4u+tq")
    A(f"s_lshr_b32 s43, s{sB}, 1")
    A("s_lshl_b32 s43, s43, 9")
    A("v_lshlrev_b32 v25, 10, v22")
    A("v_lshl_add_u32 v25, v23, 6, v25")
    A("v_lshl_add_u32 v25, v7, 4, v25")
    A("v_add_u32 v25, s43, v25")
    A("s_waitcnt lgkmcnt(0)")
    for u in range(2):
        A(f"global_load_dwordx4 v[{44+4*u}:{47+4*u}], v25, s[{sX}:{sX+1}] offset:{u*256}")
    A("s_branch L_st")
    lab("L_noq")
    A("s_cmp_lg_u32 s3, 1")
    A("s_cbranch_scc1 L_st")
    C("wave 1 of split 0 clears its pair's work counter; the workgroup publishes its q part only after that")
    A(f"s_cmp_lg_u32 s{sSPL}, 0")
    A("s_cbranch_scc1 L_st")
    A(f"s_lshl_b32 s42, s{sPAIR}, 10")
    A(f"s_add_u32 s42, s42, {CTOFF}")
    A("v_lshl_add_u32 v26, v0, 2, s42")
    A("v_mov_b32 v80, 0")
    A("s_waitcnt lgkmcnt(0)")
    A("s_mov_b32 exec_hi, 0")
    A(f"global_store_dword v26, v80, {WS} sc1")
    A("s_mov_b64 exec, -1")
    lab("L_st")
    A("s_waitcnt lgkmcnt(0)")
    A(f"s_load_dword s{sTAG}, {WS}, {EPO}")
    C("K fragment addresses: key*256 + ((t ^ (key>>2))*64) + ((g ^ (key&3))*16) + 4096*(wave&1)")
    A("s_and_b32 s43, s3, 1")
    A("s_lshl_b32 s43, s43, 12")
    A("v_xor_b32 v24, v7, v22")
    A("v_lshlrev_b32 v24, 4, v24")
    A("v_lshl_add_u32 v24, v21, 8, v24")
    A("v_add_u32 v24, s43, v24")
    for t in range(4):
        A(f"v_xor_b32 v25, {t}, v23")
        A(f"v_lshl_add_u32 v{2+t}, v25, 6, v24")
    C("V fragment address: g*1024 + (l&15)*16 + 4096*(wave&1)")
    A("v_lshlrev_b32 v6, 10, v7")
    A("v_lshl_add_u32 v6, v21, 4, v6")
    A("v_add_u32 v6, s43, v6")
    C("selector masks: lane jj keeps element jj of its four k slots")
    A("v_mov_b32 v24, 0xffff")
    A("v_mov_b32 v25, 0xffff0000")
    A("v_mov_b32 v13, 0")
    A("v_mov_b32 v14, 0")
    A("v_cmp_eq_u32 vcc, 0, v22"); nop(2); A("v_cndmask_b32 v13, v13, v24, vcc")
    A("v_cmp_eq_u32 vcc, 1, v22"); nop(2); A("v_cndmask_b32 v13, v13, v25, vcc")
    A("v_cmp_eq_u32 vcc, 2, v22"); nop(2); A("v_cndmask_b32 v14, v14, v24, vcc")
    A("v_cmp_eq_u32 vcc, 3, v22"); nop(2); A("v_cndmask_b32 v14, v14, v25, vcc")
    A("v_mov_b32 v15, 0xff800000", "running max")
    A("v_mov_b32 v16, 0xff800000", "running max * scale * log2(e)")
    A("v_mov_b32 v17, 0", "running sum")
    A("v_mov_b32 v18, 1")
    A(f"v_mov_b32 v19, {FL}")
    for r in range(88, 96): A(f"v_mov_b32 v{r}, 0")
    A(f"s_mov_b32 s{sCS}, {f2u(cs):#x}", "128^-0.5 * log2(e)")
    A("s_waitcnt lgkmcnt(0)")
    A(f"s_add_u32 s{sTAG}, s{sTAG}, 1")
    A(f"s_and_b32 s{sT8}, s{sTAG}, 0xff")
    A("s_cmp_eq_u32 s3, 0")
    A("s_cbranch_scc1 L_qprod")
    A("s_cmp_lg_u32 s3, 1")
    A("s_cbranch_scc1 L_qgather")
    A("s_waitcnt vmcnt(0)")
    A(f"ds_write_b32 v19, v18 offset:{PWF-FL}")
    A("s_branch L_qgather")
    lab("L_qprod")
    C("---- wave 0: partial q = x[:, 256k:256k+256] @ wq[256k:256k+256, 32 columns] for all four batches")
    A("v_lshl_add_u32 v24, v7, 3, v23")
    A("v_lshlrev_b32 v24, 6, v24")
    A("v_lshl_add_u32 v24, v22, 3, v24")
    A(f"v_add_u32 v24, {WST}, v24")
    def acc(ct, tq): return 64 + 16*ct + 4*tq
    def mf(pair):
        for t in (2*pair, 2*pair+1):
            for ct in range(2):
                r = 112 + 8*t + 4*ct
                d = acc(ct, t & 3)
                cin = "0" if t < 4 else f"v[{d}:{d+3}]"
                A(f"v_mfma_f32_16x16x32_bf16 v[{d}:{d+3}], v[{r}:{r+3}], v[{44+4*(t>>2)}:{47+4*(t>>2)}], {cin}")
    A(f"s_mov_b32 s44, {spin}")
    lds_wait("L_wqw", 0, "s_cmp_ge_u32", 2)
    for pair in range(4):
        if pair == 1: A("s_waitcnt vmcnt(0)")
        for t in (2*pair, 2*pair+1):
            for ct in range(2):
                r = 112 + 8*t + 4*ct
                A(f"ds_read_b64_tr_b16 v[{r}:{r+1}], v24 offset:{t*2048 + ct*32}")
                A(f"ds_read_b64_tr_b16 v[{r+2}:{r+3}], v24 offset:{t*2048 + ct*32 + 256}")
        if pair:
            A("s_waitcnt lgkmcnt(8)")
            mf(pair - 1)
    A("s_waitcnt lgkmcnt(0)")
    mf(3)
    C("q line: ((batch*8 + kv head)*2 + (b>>1))*16 + 2*s + (b&1)")
    A("v_lshlrev_b32 v25, 15, v22")
    A("v_lshl_add_u32 v25, v23, 6, v25")
    A("v_lshl_add_u32 v25, v7, 4, v25")
    A(f"s_lshl_b32 s41, s{sHKV}, 12")
    A(f"s_lshr_b32 s42, s{sB}, 1")
    A("s_lshl_b32 s42, s42, 11")
    A("s_add_u32 s41, s41, s42")
    A(f"s_lshl_b32 s42, s{sSPL}, 8")
    A("s_add_u32 s41, s41, s42")
    A(f"s_and_b32 s42, s{sB}, 1")
    A("s_lshl_b32 s42, s42, 7")
    A("s_add_u32 s41, s41, s42")
    A(f"s_add_u32 s41, s41, {QOFF}")
    A("v_add_u32 v25, s41, v25")
    A("v_mov_b32 v27, 0xffffff00")
    for (src, own, sh, bm) in ((acc(0,1), acc(0,0), "row_shl:4", 1), (acc(1,0), acc(1,1), "row_shr:4", 2),
                               (acc(0,2), 60, "row_shl:8", 1), (acc(1,2), 60, "row_shl:4", 2),
                               (acc(0,3), 60, "row_shl:12", 1), (acc(1,3), 60, "row_shl:8", 2)):
        for r in range(4):
            A(f"v_add_f32_dpp v{60+r}, v{src+r}, v{own+r} {sh} row_mask:0xf bank_mask:{bm:#x}")
    for r in range(88, 96): A(f"v_mov_b32 v{r}, 0")
    for r in range(4): A(f"v_and_or_b32 v{60+r}, v{60+r}, v27, s{sT8}")
    A(f"s_mov_b32 s44, {spin}")
    lds_wait("L_pww", PWF-FL, "s_cmp_lg_u32", 0)
    A("s_mov_b32 exec_lo, 0x00ff00ff")
    A("s_mov_b32 exec_hi, 0x00ff00ff")
    A(f"global_store_dwordx4 v25, v[60:63], {WS} sc1")
    A("s_mov_b64 exec, -1")
    lab("L_qgather")
    C("---- wave w adds the two halves of head w's q, rounds to bf16 and shares it through LDS")
    A("v_and_b32 v25, 31, v0")
    A("v_lshlrev_b32 v24, 4, v25")
    A("v_lshrrev_b32 v26, 5, v0")
    A("v_lshl_add_u32 v24, v26, 11, v24")
    A(f"s_lshl_b32 s41, s{sPAIR}, 12")
    A("s_lshl_b32 s42, s3, 9")
    A("s_add_u32 s41, s41, s42")
    A(f"s_add_u32 s41, s41, {QOFF}")
    A("v_add_u32 v148, s41, v24")
    A("s_lshl_b32 s42, s3, 8")
    A(f"s_add_u32 s42, s42, {QB}")
    A("v_lshl_add_u32 v149, v25, 3, s42")
    C("---- addresses of the final phase")
    vOSC, vMLW, vH1O, vS2W, vS2R, vR2P, vH2A, vH2B, vOUT, vMSK, vWO = range(112, 123)
    A(f"s_lshl_b32 s{sHEAD}, s{sHKV}, 2")
    A(f"s_lshr_b32 s45, s{sSPL}, 1")
    A(f"s_add_u32 s{sHEAD}, s{sHEAD}, s45", "head = kv head*4 + (s>>1)")
    A(f"s_and_b32 s{sHALF}, s{sSPL}, 1", "half of its 128 rows")
    A("v_lshlrev_b32 v20, 4, v0")
    A("s_lshl_b32 s43, s3, 11")
    A(f"v_add_u32 v{vS2W}, s43, v20")
    A(f"v_add_u32 v{vOSC}, {WST}, v{vS2W}")
    A("s_lshl_b32 s43, s3, 5")
    A(f"s_add_u32 s43, s43, {WST+8192}")
    A(f"v_lshl_add_u32 v{vMLW}, v23, 3, s43")
    A("s_and_b32 s43, s3, 1")
    A("s_lshl_b32 s43, s43, 1")
    vec_coords("s43")
    A(f"v_mov_b32 v{vS2R}, v25")
    r2_addr(vR2P)
    C("R1 reads: line (head*4 + g)*32 + p, g = 2*half + (w>>1), p = batch*8 + jj (+4); 64-byte half w&1, piece l>>4")
    A("v_lshl_add_u32 v24, v23, 3, v22")
    A("v_lshlrev_b32 v24, 7, v24")
    A("v_lshl_add_u32 v24, v7, 4, v24")
    A(f"s_lshl_b32 s41, s{sHEAD}, 2")
    A(f"s_lshl_b32 s45, s{sHALF}, 1")
    A("s_add_u32 s41, s41, s45")
    A("s_lshr_b32 s45, s3, 1")
    A("s_add_u32 s41, s41, s45")
    A("s_lshl_b32 s46, s41, 5")
    A("s_lshl_b32 s41, s41, 12")
    A("s_and_b32 s45, s3, 1")
    A("s_lshl_b32 s43, s45, 2")
    A("s_add_u32 s46, s46, s43")
    A("s_lshl_b32 s45, s45, 6")
    A("s_add_u32 s41, s41, s45")
    A(f"s_add_u32 s41, s41, {R1OFF}")
    A(f"v_add_u32 v{vH1O}, s41, v24")
    C("wo rows head*128 + 32*g + 8*tau + 4*(w&1) + (l>>4), columns 128*b + 8*(l&15)")
    A("s_lshl_b32 s46, s46, 10")
    A(f"s_lshl_b32 s45, s{sB}, 8")
    A("s_add_u32 s46, s46, s45")
    A(f"v_lshlrev_b32 v{vWO}, 10, v7")
    A(f"v_lshl_add_u32 v{vWO}, v21, 4, v{vWO}")
    A(f"v_add_u32 v{vWO}, s46, v{vWO}")
    C("R2 reads: 64 lines of region s46 = (column block, batch, g), 32 bytes b of each")
    A("v_lshrrev_b32 v24, 1, v0")
    A("v_lshlrev_b32 v24, 7, v24")
    A("v_and_b32 v25, 1, v0")
    A("v_lshl_add_u32 v24, v25, 4, v24")
    A("s_and_b32 s41, s2, 31")
    A("s_lshl_b32 s41, s41, 1")
    A("s_bfe_u32 s45, s2, 0x10005")
    A("s_add_u32 s46, s41, s45")
    A("s_lshl_b32 s41, s46, 13")
    A(f"s_lshl_b32 s45, s{sB}, 5")
    A("s_add_u32 s41, s41, s45")
    A(f"s_add_u32 s41, s41, {R2OFF}")
    A(f"v_add_u32 v{vH2A}, s41, v24")
    A(f"v_add_u32 v{vH2B}, 0x1000, v{vH2A}")
    C("output columns 128*block + 32*g + 8*r + 2*b, r = [0,2,1,3][l>>4]")
    A("s_bfe_u32 s41, s46, 0x20002")
    A("s_lshl_b32 s41, s41, 10")
    A("s_bfe_u32 s45, s46, 0x20004")
    A("s_lshl_b32 s45, s45, 8")
    A("s_add_u32 s41, s41, s45")
    A("s_and_b32 s45, s46, 3")
    A("s_lshl_b32 s45, s45, 6")
    A("s_add_u32 s41, s41, s45")
    A(f"s_lshl_b32 s45, s{sB}, 2")
    A("s_add_u32 s41, s41, s45")
    A("v_and_b32 v24, 1, v7")
    A("v_lshlrev_b32 v24, 5, v24")
    A("v_lshrrev_b32 v25, 1, v7")
    A("v_lshl_add_u32 v24, v25, 4, v24")
    A(f"v_add_u32 v{vOUT}, s41, v24")
    A(f"v_mov_b32 v{vMSK}, 0xffffff00")
    A("s_mov_b32 s57, 0x0c04000c")
    A("s_mov_b32 s58, 0x04020100")
    A(f"s_mov_b32 s44, {spin}")
    C("start looking for q once a few blocks have landed")
    lds_wait("L_qdel", 0, "s_cmp_ge_u32", qdelay)
    def poll(lbl, loads, tagged):
        C("load until every piece carries this launch's tag; lanes that are served stop loading")
        lab(lbl)
        for ld in loads: A(ld)
        A("s_sub_u32 s44, s44, 1")
        A(f"s_cbranch_scc1 {lbl}_x")
        A("s_waitcnt vmcnt(0)")
        t = 68
        for j, r in enumerate(tagged): A(f"v_xor_b32 v{t+j}, s{sT8}, v{r}")
        if len(tagged) == 8:
            A(f"v_or3_b32 v{t}, v{t}, v{t+1}, v{t+2}")
            A(f"v_or3_b32 v{t+3}, v{t+3}, v{t+4}, v{t+5}")
            A(f"v_or3_b32 v{t}, v{t}, v{t+6}, v{t+7}")
            A(f"v_or_b32 v{t}, v{t}, v{t+3}")
        elif len(tagged) == 4:
            A(f"v_or3_b32 v{t}, v{t}, v{t+1}, v{t+2}")
            A(f"v_or_b32 v{t}, v{t}, v{t+3}")
        else:
            A(f"v_or_b32 v{t}, v{t}, v{t+1}")
        A(f"v_and_b32 v{t}, 0xff, v{t}")
        A(f"v_cmp_ne_u32 vcc, 0, v{t}")
        if len(tagged) >= 4:
            A("s_and_b64 exec, exec, vcc")
        else:
            C("one tag byte per piece: the four lanes that read one writer's 64 bytes are accepted together")
            A("s_or_b32 s45, vcc_lo, vcc_hi")
            A("s_lshr_b32 s46, s45, 16")
            A("s_or_b32 s45, s45, s46")
            A("s_pack_ll_b32_b16 s46, s45, s45")
            A("s_mov_b32 s47, s46")
            A("s_and_b64 exec, exec, s[46:47]")
        A(f"s_cbranch_scc1 {lbl}")
        lab(f"{lbl}_x")
        A("s_mov_b64 exec, -1")
        A("s_waitcnt vmcnt(0)")
    poll("L_qpoll", [f"global_load_dwordx4 v[44:47], v148, {WS} sc1"], list(range(44, 48)))
    for r in range(4): A(f"v_mov_b32 v{48+r}, v{44+r}")
    for r in range(4): A(f"v_permlane32_swap_b32 v{44+r}, v{48+r}")
    for r in range(4): A(f"v_add_f32 v{44+r}, v{44+r}, v{48+r}")
    A("v_cvt_pk_bf16_f32 v44, v44, v45")
    A("v_cvt_pk_bf16_f32 v45, v46, v47")
    A("ds_write_b64 v149, v[44:45]")
    A("v_lshlrev_b32 v24, 8, v23")
    A("v_lshl_add_u32 v24, v7, 4, v24")
    A(f"v_add_u32 v24, {QB}, v24")
    A("s_mov_b64 exec, 1")
    A(f"ds_add_u32 v19, v18 offset:{QCNT-FL}")
    A("s_mov_b64 exec, -1")
    lds_wait("L_qw", QCNT-FL, "s_cmp_ge_u32", 4)
    for t in range(4): A(f"ds_read_b128 v[{28+4*t}:{31+4*t}], v24 offset:{t*64}")
    C("---- main loop: waves 0,1 take even blocks, waves 2,3 odd ones, 16 keys each")
    A("s_lshr_b32 s47, s3, 1", "block m")
    A("s_lshl_b32 s48, s47, 14", "LDS offset of its K rows")
    A("s_add_u32 s39, s47, 2", "READY must exceed this")
    A("s_mov_b32 s49, 0", "parts landed, as last seen")
    A("s_mov_b32 s55, 0", "raw READY word")
    lab("L_blk")
    for t in range(4): A(f"v_add_u32 v{8+t}, s48, v{2+t}")
    A("s_add_u32 s50, s48, 16384")
    A(f"s_and_b32 s50, s50, {RING-1}")
    A("s_lshr_b32 s54, s50, 11")
    A("s_add_u32 s50, s50, 8192")
    A("v_add_u32 v12, s50, v6")
    A("s_cmp_gt_u32 s49, s39")
    A("s_cbranch_scc1 L_kok")
    A(f"s_mov_b32 s44, {spin}")
    lab("L_kpoll")
    A("s_lshr_b32 s55, s55, 16")
    A("s_sub_u32 s55, s55, 1", "number of blocks, or -1 while unknown")
    A("s_cmp_ge_u32 s47, s55")
    A("s_cbranch_scc1 L_loopend")
    A("ds_read_b32 v20, v19")
    A("s_sub_u32 s44, s44, 1")
    A("s_cbranch_scc1 L_loopend")
    A("s_waitcnt lgkmcnt(0)")
    A("v_readfirstlane_b32 s55, v20")
    A("s_and_b32 s49, s55, 0xffff")
    A("s_cmp_gt_u32 s49, s39")
    A("s_cbranch_scc0 L_kpoll")
    lab("L_kok")
    for t in range(4): A(f"ds_read_b128 v[{44+4*t}:{47+4*t}], v{8+t}")
    A("s_lshr_b32 s51, s48, 11")
    A("s_lshl_b32 s39, s47, 1")
    A("s_add_u32 s39, s39, 4", "READY must exceed 2m+4 for V")
    A("v_add_u32 v21, s51, v19")
    A("v_add_u32 v123, s54, v19")
    for t in range(4):
        A(f"s_waitcnt lgkmcnt({3-t})")
        cin = "0" if t == 0 else "v[76:79]"
        A(f"v_mfma_f32_16x16x32_bf16 v[76:79], v[{44+4*t}:{47+4*t}], v[{28+4*t}:{31+4*t}], {cin}")
    A("s_mov_b64 exec, 1")
    A("ds_add_u32 v21, v18 offset:8", "release the K half")
    A("s_mov_b64 exec, -1")
    A("s_cmp_gt_u32 s49, s39")
    A("s_cbranch_scc1 L_vok")
    nop(3)
    A("v_max3_f32 v20, v76, v77, v78")
    A("v_max_f32 v20, v20, v79")
    A("v_cmp_gt_f32 vcc, v20, v15")
    A("s_cbranch_vccz L_nomax1")
    A("s_mov_b32 s52, 1")
    A("s_branch L_newmax")
    lab("L_nomax1")
    def softmax():
        for r in range(4): A(f"v_fma_f32 v{76+r}, v{76+r}, s{sCS}, -v16")
        for r in range(4): A(f"v_exp_f32 v{76+r}, v{76+r}")
        nop(1)
        for r in range(4): A(f"v_cvt_pk_bf16_f32 v{24+r}, v{76+r}, v{76+r}")
        A("v_add_f32 v76, v76, v77")
        A("v_add_f32 v78, v78, v79")
        for r in range(4):
            A(f"v_and_b32 v{80+2*r}, v{24+r}, v13")
            A(f"v_and_b32 v{81+2*r}, v{24+r}, v14")
        A("v_add_f32 v76, v76, v78")
        A("v_add_f32 v17, v17, v76")
    def vreads():
        for tau in range(4): A(f"ds_read_b128 v[{60+4*tau}:{63+4*tau}], v12 offset:{tau*256}")
    def pv():
        for tau in range(4):
            A(f"s_waitcnt lgkmcnt({3-tau})")
            A(f"v_mfma_f32_16x16x16_bf16 v[88:91], v[{60+4*tau}:{61+4*tau}], v[{80+2*tau}:{81+2*tau}], v[88:91]")
            A(f"v_mfma_f32_16x16x16_bf16 v[92:95], v[{62+4*tau}:{63+4*tau}], v[{80+2*tau}:{81+2*tau}], v[92:95]")
    softmax()
    A(f"s_mov_b32 s44, {spin}")
    A("s_add_u32 s50, s47, 2")
    A("s_mov_b32 s38, 1")
    lab("L_vpoll")
    A("s_lshr_b32 s55, s55, 16")
    A("s_cmp_eq_u32 s55, s50", "last block: barrier A signals its V rows")
    A("s_cbranch_scc1 L_fin1")
    A("ds_read_b32 v20, v19")
    A("s_sub_u32 s44, s44, 1")
    A("s_cbranch_scc1 L_vok1")
    A("s_waitcnt lgkmcnt(0)")
    A("v_readfirstlane_b32 s55, v20")
    A("s_and_b32 s49, s55, 0xffff")
    A("s_cmp_gt_u32 s49, s39")
    A("s_cbranch_scc0 L_vpoll")
    lab("L_vok1")
    vreads()
    A("s_branch L_pv")
    lab("L_vok")
    vreads()
    A("v_max3_f32 v20, v76, v77, v78")
    A("v_max_f32 v20, v20, v79")
    A("v_cmp_gt_f32 vcc, v20, v15")
    A("s_cbranch_vccz L_nomax2")
    A("s_mov_b32 s52, 0")
    lab("L_newmax")
    C("the running max rose for some head: take the max over the 16 keys and rescale")
    A("v_mov_b32 v24, v20")
    nop(2)
    A("v_permlane16_swap_b32 v20, v24")
    nop(1)
    A("v_max_f32 v20, v20, v24")
    A("v_mov_b32 v24, v20")
    nop(2)
    A("v_permlane32_swap_b32 v20, v24")
    nop(1)
    A("v_max3_f32 v20, v20, v24, v15")
    A("v_sub_f32 v24, v15, v20")
    A(f"v_mul_f32 v24, s{sCS}, v24")
    A("v_exp_f32 v24, v24")
    A("v_mov_b32 v15, v20")
    A(f"v_mul_f32 v16, s{sCS}, v20")
    A("v_mul_f32 v17, v17, v24")
    for r in range(88, 96): A(f"v_mul_f32 v{r}, v{r}, v24")
    A("s_cmp_eq_u32 s52, 1")
    A("s_cbranch_scc1 L_nomax1")
    lab("L_nomax2")
    softmax()
    lab("L_pv")
    A("s_add_u32 s47, s47, 2")
    A("s_add_u32 s39, s39, 1", "2(m+2)+1 for the next K")
    A("s_add_u32 s48, s48, 32768")
    A(f"s_and_b32 s48, s48, {RING-1}")
    pv()
    A("s_mov_b64 exec, 1")
    A("ds_add_u32 v123, v18 offset:12", "release the V half")
    A("s_mov_b64 exec, -1")
    A("s_branch L_blk")
    lab("L_loopend")
    A("s_mov_b32 s38, 0")
    A(f"ds_write_b128 v{vOSC}, v[88:91]")
    A(f"ds_write_b128 v{vOSC}, v[92:95] offset:1024")
    lab("L_fin1")
    C("---- hand the four waves' partial results to the publishing waves through LDS")
    A("v_mov_b32 v24, v17")
    A(f"s_mov_b32 s44, {spin}")
    A("s_cmp_eq_u32 s38, 0")
    A("v_permlane16_swap_b32 v17, v24")
    nop(1)
    A("v_add_f32 v17, v17, v24")
    A("v_mov_b32 v24, v17")
    nop(2)
    A("v_permlane32_swap_b32 v17, v24")
    nop(1)
    A("v_add_f32 v17, v17, v24")
    A(f"ds_write_b64 v{vMLW}, v[16:17]")
    C("this wave's 16 rows x 128 columns of wo travel while the partial results are exchanged")
    for tau in range(4):
        if tau: A(f"v_add_u32 v{vWO}, 0x2000, v{vWO}")
        A(f"global_load_dwordx4 v[{96+4*tau}:{99+4*tau}], v{vWO}, s[{sWO}:{sWO+1}] nt")
    A("s_waitcnt lgkmcnt(0)")
    A("s_barrier", "A")
    A("s_cbranch_scc1 L_fin2")
    vreads()
    pv()
    nop(7)
    A(f"ds_write_b128 v{vOSC}, v[88:91]")
    A(f"ds_write_b128 v{vOSC}, v[92:95] offset:1024")
    A("s_waitcnt lgkmcnt(0)")
    lab("L_fin2")
    A("s_barrier", "B")
    A("s_barrier", "C")
    C("---- hand-off R1: 8 splits x 4 batches of this wave's 16 rows of one head")
    poll("L_h1poll", [f"global_load_dwordx4 v[52:55], v{vH1O}, {WS} sc1",
                      f"global_load_dwordx4 v[56:59], v{vH1O}, {WS} offset:512 sc1"], [55, 59])
    A("v_max_f32 v20, v55, v59")
    A("v_perm_b32 v44, v53, v52, s57")
    A("v_perm_b32 v45, v57, v56, s57")
    A("v_max_f32_dpp v20, v20, v20 quad_perm:[1,0,3,2] row_mask:0xf bank_mask:0xf")
    A("v_perm_b32 v44, v54, v44, s58")
    A("v_perm_b32 v45, v58, v45, s58")
    A("v_max_f32_dpp v20, v20, v20 quad_perm:[2,3,0,1] row_mask:0xf bank_mask:0xf")
    A("v_sub_f32 v46, v55, v20")
    A("v_sub_f32 v47, v59, v20")
    A("v_exp_f32 v46, v46")
    A("v_exp_f32 v47, v47")
    A(f"s_mov_b32 s44, {spin}")
    A("v_mul_f32 v60, v52, v46")
    A("v_add_f32 v20, v46, v47")
    A("v_mul_f32 v61, v53, v46")
    A("v_mul_f32 v62, v54, v46")
    A("v_mul_f32 v63, v44, v46")
    A("v_add_f32_dpp v20, v20, v20 quad_perm:[1,0,3,2] row_mask:0xf bank_mask:0xf")
    A("v_fmac_f32 v60, v56, v47")
    A("v_fmac_f32 v61, v57, v47")
    A("v_add_f32_dpp v20, v20, v20 quad_perm:[2,3,0,1] row_mask:0xf bank_mask:0xf")
    A("v_fmac_f32 v62, v58, v47")
    A("v_fmac_f32 v63, v45, v47")
    A("v_rcp_f32 v20, v20")
    for r in range(4): A(f"v_add_f32_dpp v{60+r}, v{60+r}, v{60+r} quad_perm:[1,0,3,2] row_mask:0xf bank_mask:0xf")
    for r in range(4): A(f"v_add_f32_dpp v{60+r}, v{60+r}, v{60+r} quad_perm:[2,3,0,1] row_mask:0xf bank_mask:0xf")
    for r in range(4): A(f"v_mul_f32 v{60+r}, v{60+r}, v20")
    for r in range(4): A(f"v_cvt_pk_bf16_f32 v{60+r}, v{60+r}, v{60+r}")
    for r in range(4):
        A(f"v_and_b32 v{80+2*r}, v{60+r}, v13")
        A(f"v_and_b32 v{81+2*r}, v{60+r}, v14")
        if r:
            tau = r - 1
            c0 = "0" if tau == 0 else "v[88:91]"
            c1 = "0" if tau == 0 else "v[92:95]"
            A(f"v_mfma_f32_16x16x16_bf16 v[88:91], v[{96+4*tau}:{97+4*tau}], v[{80+2*tau}:{81+2*tau}], {c0}")
            A(f"v_mfma_f32_16x16x16_bf16 v[92:95], v[{98+4*tau}:{99+4*tau}], v[{80+2*tau}:{81+2*tau}], {c1}")
    A("v_mfma_f32_16x16x16_bf16 v[88:91], v[108:109], v[86:87], v[88:91]")
    A("v_mfma_f32_16x16x16_bf16 v[92:95], v[110:111], v[86:87], v[92:95]")
    C("add the four waves' products through LDS (the start of the ring is free by now)")
    A("s_cmp_ge_u32 s3, 2")
    nop(6)
    A(f"ds_write_b128 v{vS2W}, v[88:91]")
    A(f"ds_write_b128 v{vS2W}, v[92:95] offset:1024")
    A("s_waitcnt lgkmcnt(0)")
    A("s_barrier", "D")
    A("s_cbranch_scc1 L_h2")
    for w in range(4): A(f"ds_read_b128 v[{60+4*w}:{63+4*w}], v{vS2R} offset:{w*2048}")
    A("s_waitcnt lgkmcnt(2)")
    A("v_pk_add_f32 v[60:61], v[60:61], v[64:65]")
    A("v_pk_add_f32 v[62:63], v[62:63], v[66:67]")
    A("s_waitcnt lgkmcnt(0)")
    A("v_pk_add_f32 v[68:69], v[68:69], v[72:73]")
    A("v_pk_add_f32 v[70:71], v[70:71], v[74:75]")
    A("v_pk_add_f32 v[60:61], v[60:61], v[68:69]")
    A("v_pk_add_f32 v[62:63], v[62:63], v[70:71]")
    for r in range(4): A(f"v_and_or_b32 v{60+r}, v{60+r}, v{vMSK}, s{sT8}")
    A(f"global_store_dwordx4 v{vR2P}, v[60:63], {WS} sc1")
    A("s_waitcnt vmcnt(0)")
    A("s_barrier", "E: the publishing stores are complete")
    A("s_endpgm")
    lab("L_h2")
    A("s_cmp_eq_u32 s3, 3")
    A("s_barrier", "E")
    A("s_cbranch_scc1 L_fin")
    C("---- hand-off R2: wave 2 adds 64 row-slices for 8 outputs of one batch")
    poll("L_h2poll", [f"global_load_dwordx4 v[52:55], v{vH2A}, {WS} sc1",
                      f"global_load_dwordx4 v[56:59], v{vH2B}, {WS} sc1"], list(range(52, 60)))
    A("v_pk_add_f32 v[52:53], v[52:53], v[56:57]")
    A("v_pk_add_f32 v[54:55], v[54:55], v[58:59]")
    nop(1)
    A("v_permlane32_swap_b32 v52, v53")
    A("v_permlane32_swap_b32 v54, v55")
    nop(1)
    A("v_add_f32 v52, v52, v53")
    A("v_add_f32 v54, v54, v55")
    nop(2)
    A("v_permlane16_swap_b32 v52, v54")
    nop(1)
    A("v_add_f32 v52, v52, v54")
    for dpp in ("quad_perm:[2,3,0,1]", "row_ror:4", "row_ror:8"):
        nop(2)
        A(f"v_add_f32_dpp v52, v52, v52 {dpp} row_mask:0xf bank_mask:0xf")
    A("s_mov_b32 s46, 0x00010001")
    A("s_mov_b32 s47, 0x00010001")
    A("v_mov_b32_dpp v53, v52 quad_perm:[1,0,3,2] row_mask:0xf bank_mask:0xf")
    A("s_mov_b64 exec, s[46:47]")
    A("v_cvt_pk_bf16_f32 v52, v52, v53")
    A(f"global_store_dword v{vOUT}, v52, s[{sOUT}:{sOUT+1}]")
    A("s_cmp_lg_u32 s2, 0")
    A("s_cbranch_scc1 L_fin")
    C("every workgroup has read the old tag and published with the new one by now: store it for the next launch")
    A("s_mov_b64 exec, 1")
    A(f"v_mov_b32 v25, s{sTAG}")
    A("v_mov_b32 v24, 0")
    A(f"global_store_dword v24, v25, {WS} offset:{EPO}")
    lab("L_fin")
    A("s_endpgm")

    lab("L_claimer")
    A("s_waitcnt lgkmcnt(0)")
    A(f"s_load_dword s{sTAG}, {WS}, {EPO}")
    A("s_mov_b32 s48, 2")
    vec_coords("s48")
    r1_addr(28)
    A(f"s_lshl_b32 s42, s{sPAIR}, 10")
    A(f"s_add_u32 s42, s42, {CTOFF}")
    A(f"s_add_u32 s28, s{sWS}, s42")
    A(f"s_addc_u32 s29, s{sWS+1}, 0")
    A("s_mov_b32 s30, 0", "counters as last seen")
    A(f"s_lshl_b32 s38, s{sSPL}, 2")
    A(f"v_mov_b32 v4, {FL}")
    A(f"v_mov_b32 v5, {MBOX}")
    A(f"s_mov_b32 s43, {2*S - cah}")
    A("s_mov_b64 exec, 1")
    A(f"s_mov_b32 s44, {spin}")
    lab("L_cl")
    A("ds_read_b32 v6, v4")
    A("s_sub_u32 s44, s44, 1")
    A("s_cbranch_scc1 L_cl_x")
    A("s_waitcnt lgkmcnt(0)")
    A("v_readfirstlane_b32 s45, v6")
    A("s_and_b32 s45, s45, 0xffff")
    A("s_cmp_ge_u32 s45, s43")
    A("s_cbranch_scc0 L_cl")
    C("eight 4-bit counters in one word, one per column of blocks: take from the own column first, then from the fullest")
    assert LIM + 8 < 16
    lab("L_pick")
    A("s_mov_b32 s31, s30")
    A("s_lshr_b64 s[46:47], s[30:31], s38", "rotated: field 0 = own column")
    A("s_and_b32 s45, s46, 15")
    A("s_mov_b32 s50, 0")
    A(f"s_cmp_lt_u32 s45, {LIM}")
    A("s_cbranch_scc1 L_take")
    A(f"s_mov_b32 s50, {LIM << 3}")
    for j in range(1, 8):
        A(f"s_bfe_u32 s45, s46, {0x40000 + 4 * j:#x}")
        A(f"s_lshl3_add_u32 s45, s45, {j}")
        A("s_min_u32 s50, s50, s45")
    A(f"s_mov_b32 s45, {NB + 1}", "nothing left")
    A(f"s_cmp_ge_u32 s50, {LIM << 3}")
    A("s_cbranch_scc1 L_post")
    lab("L_take")
    A(f"s_add_u32 s50, s50, s{sSPL}")
    A("s_and_b32 s50, s50, 7", "column")
    A("s_lshl_b32 s51, s50, 2")
    A("s_lshl_b32 s46, 1, s51")
    A("s_mov_b32 s30, s46")
    A("s_atomic_add s46, s[28:29], 0x0 glc")
    A("s_waitcnt lgkmcnt(0)")
    A("s_add_u32 s30, s30, s46")
    A("s_lshr_b32 s46, s46, s51")
    A("s_and_b32 s45, s46, 15")
    A(f"s_cmp_ge_u32 s45, {LIM}")
    A("s_cbranch_scc1 L_pick")
    A("s_lshl3_add_u32 s45, s45, s50")
    A(f"s_add_u32 s45, s45, {8*S + 1}")
    lab("L_post")
    A("s_add_u32 s43, s43, 2")
    A("v_mov_b32 v7, s45")
    A("ds_write_b32 v5, v7")
    A("v_add_u32 v5, 4, v5")
    A(f"s_cmp_gt_u32 s45, {NB}")
    A("s_cbranch_scc0 L_cl")
    lab("L_cl_x")
    C("the stream is ending: bring the R1 lines this workgroup will write on chip")
    A("s_mov_b32 exec_lo, 0x01010101")
    A("s_mov_b32 exec_hi, 0x01010101")
    A("v_subrev_u32 v35, 0x8000, v28")
    A(f"global_load_dword v40, v28, {WS}")
    A(f"global_load_dword v41, v35, {WS}")
    A("s_mov_b64 exec, -1")
    A("s_branch L_publish")
    lab("L_codeend")

    src = HEAD + f"; @launch grid=(256,1,1) block=(384,1,1) lds={LDS}\n"
    src += f""".amdgcn_target "amdgcn-amd-amdhsa--gfx950"
.text
.globl {KN}
.p2align 8
.type {KN},@function
{KN}:
""" + "\n".join(L) + f"""
    s_endpgm
.section .rodata,"a"
.p2align 6
.amdhsa_kernel {KN}
  .amdhsa_next_free_vgpr 176
  .amdhsa_next_free_sgpr 64
  .amdhsa_accum_offset 176
  .amdhsa_group_segment_fixed_size 0
  .amdhsa_kernarg_size 64
  .amdhsa_user_sgpr_count 2
  .amdhsa_user_sgpr_kernarg_segment_ptr 1
  .amdhsa_system_sgpr_workgroup_id_x 1
  .amdhsa_float_denorm_mode_32 3
.end_amdhsa_kernel
"""
    return src

if __name__ == "__main__":
    kw = eval("dict(" + (sys.argv[2] if len(sys.argv) > 2 else "") + ")")
    open(sys.argv[1], "w").write(gen(**kw))
```
